```python
import torch

def _softmax(x, axis=-1):
    return torch.softmax(x, dim=axis)
def _gelu(x):
    return torch.nn.functional.gelu(x, approximate="tanh")
def _silu(x):
    return torch.nn.functional.silu(x)
def _sigmoid(x):
    return torch.sigmoid(x)
def _layernorm(x, axis=-1, eps=1e-5):
    m = x.mean(dim=axis, keepdim=True)
    v = x.var(dim=axis, keepdim=True, unbiased=False)
    return (x - m) / torch.sqrt(v + eps)
def _scatter_add(tgt, idx, src, axis=0):
    return tgt.clone().index_add_(axis, idx, src)
def _segment_sum(src, seg, n):
    out = torch.zeros((n,) + src.shape[1:], dtype=src.dtype)
    return out.index_add_(0, seg, src)
def _pad(x, pw):
    flat = tuple(v for pair in reversed(pw) for v in pair)
    return torch.nn.functional.pad(x, flat)

kernel_name = 'concat_heads__mha_block_cached__gqa_block_cached__near_ridge'

def setup_inputs():

    _w = (lambda a: (lambda t: t.to(torch.bfloat16) if t.is_floating_point() else t)(torch.as_tensor(a)))
    def _A_setup():
        B, Sq, D = 8, 224, 512
        H, Sk, Dh = 32, 1024, 128
        return {
            "x": _w((lambda *s: torch.randn(*s, dtype=torch.bfloat16) * 0.8)(B, Sq, D)),
            "k_cache": _w((lambda *s: torch.randn(*s, dtype=torch.bfloat16) * 0.8)(B, H, Sk, Dh)),
            "v_cache": _w((lambda *s: torch.randn(*s, dtype=torch.bfloat16) * 0.05)(B, H, Sk, Dh)),
            "wq": _w((lambda *s: torch.randn(*s, dtype=torch.bfloat16) * 0.8)(D, H * Dh) * (D ** -0.5)),
            "wo": _w((lambda *s: torch.randn(*s, dtype=torch.bfloat16) * 0.05)(H * Dh, D) * ((H * Dh) ** -0.5)),
        }
    _A_in = _A_setup()

    def _B_setup():
        B, Sq, D = 8, 224, 512
        Hq, Hkv, Sk, Dh = 32, 32, 1024, 128
        assert Hq % Hkv == 0, (Hq, Hkv)
        return {
            "x": _w((lambda *s: torch.randn(*s, dtype=torch.bfloat16) * 0.8)(B, Sq, D)),
            "k_cache": _w((lambda *s: torch.randn(*s, dtype=torch.bfloat16) * 0.8)(B, Hkv, Sk, Dh)),
            "v_cache": _w((lambda *s: torch.randn(*s, dtype=torch.bfloat16) * 0.05)(B, Hkv, Sk, Dh)),
            "wq": _w((lambda *s: torch.randn(*s, dtype=torch.bfloat16) * 0.8)(D, Hq * Dh) * (D ** -0.5)),
            "wo": _w((lambda *s: torch.randn(*s, dtype=torch.bfloat16) * 0.05)(Hq * Dh, D) * ((Hq * Dh) ** -0.5)),
        }
    _B_in = _B_setup()

    return {
        "A_x": _A_in["x"],
        "A_k_cache": _A_in["k_cache"],
        "A_v_cache": _A_in["v_cache"],
        "A_wq": _A_in["wq"],
        "A_wo": _A_in["wo"],
        "B_x": _B_in["x"],
        "B_k_cache": _B_in["k_cache"],
        "B_v_cache": _B_in["v_cache"],
        "B_wq": _B_in["wq"],
        "B_wo": _B_in["wo"],
    }

def reference(A_x, A_k_cache, A_v_cache, A_wq, A_wo, B_x, B_k_cache, B_v_cache, B_wq, B_wo):
    def _A_ref(x, k_cache, v_cache, wq, wo):
        B, Sq, D = x.shape
        H, Dh = 32, 128
        q = (lambda x, *d: x.permute(*d))((x @ wq).reshape(B, Sq, H, Dh), 0, 2, 1, 3)
        scores = torch.einsum("bhqd,bhkd->bhqk", q, k_cache) * (Dh ** -0.5)
        p = _softmax(scores, axis=-1)
        o = torch.einsum("bhqk,bhkd->bhqd", p, v_cache)
        return (lambda x, *d: x.permute(*d))(o, 0, 2, 1, 3).reshape(B, Sq, H * Dh) @ wo

    def _B_ref(x, k_cache, v_cache, wq, wo):
        B, Sq, D = x.shape
        Hq, Dh = 32, 128
        Hkv = k_cache.shape[1]
        rep = Hq // Hkv
        q = (lambda x, *d: x.permute(*d))((x @ wq).reshape(B, Sq, Hq, Dh), 0, 2, 1, 3)
        k = (lambda x, n, axis: torch.repeat_interleave(x, n, dim=axis))(k_cache, rep, axis=1)
        v = (lambda x, n, axis: torch.repeat_interleave(x, n, dim=axis))(v_cache, rep, axis=1)
        scores = torch.einsum("bhqd,bhkd->bhqk", q, k) * (Dh ** -0.5)
        p = _softmax(scores, axis=-1)
        o = torch.einsum("bhqk,bhkd->bhqd", p, v)
        return (lambda x, *d: x.permute(*d))(o, 0, 2, 1, 3).reshape(B, Sq, Hq * Dh) @ wo

    a = _A_ref(A_x, A_k_cache, A_v_cache, A_wq, A_wo)
    b = _B_ref(B_x, B_k_cache, B_v_cache, B_wq, B_wo)
    return torch.concatenate([a, b], axis=-1)
```

```python
import re
RG = re.compile(r'^-?([va])(\d+)$|^-?([va])\[(\d+):(\d+)\]$')
def regs(op):
    m = RG.match(op.strip())
    if not m: return set()
    if m.group(1):
        b = 256 if m.group(1) == 'a' else 0
        return {b + int(m.group(2))}
    b = 256 if m.group(3) == 'a' else 0
    return set(range(b + int(m.group(4)), b + int(m.group(5)) + 1))
TRANS = ('v_exp_f32', 'v_rcp_f32', 'v_log_f32', 'v_rsq_f32')
class Em:
    def __init__(s):
        s.out = []; s.hist = []; s.lgk = []; s.dry = False
    def raw(s, t):
        if not s.dry: s.out.append(t)
    def parse(s, t):
        body = t.split(';')[0].strip()
        op, _, rest = body.partition(' ')
        ops = [o.strip().split(' ')[0] for o in rest.split(',')] if rest else []
        k = 'o'; w = set(); r = set(); c = set(); ab = set()
        R = [regs(o) for o in ops]
        U = lambda l: set().union(*l) if l else set()
        if op.startswith('v_mfma'):
            k = 'm'; w = R[0]; ab = R[1] | R[2]; c = R[3]; r = ab | c
        elif op.startswith('v_cmp') or op.startswith('v_readfirstlane') or op.startswith('v_readlane'):
            k = 'v'; r = U(R[1:])
        elif op.startswith('v_permlane'):
            k = 'v'; w = R[0] | R[1]; r = set(w)
        elif op.startswith('v_'):
            k = 'v'; w = R[0]; r = U(R[1:])
            if op.startswith('v_fmac'): r |= w
        elif op.startswith('ds_read'):
            k = 'dr'; w = R[0]; r = R[1]
        elif op.startswith('ds_write'):
            k = 'dw'; r = U(R)
        elif op.startswith('buffer_load'):
            if ' lds' in body: k = 'vm'; r = R[0]
            else: k = 'vl'; w = R[0]; r = R[1]
        elif op.startswith('buffer_store'):
            k = 'vs'; r = U(R[:2])
        return dict(op=op, k=k, w=w, r=r, c=c, ab=ab, wide=(k == 'vs' and 'x4' in op), sd=(R[0] if k == 'vs' else set()))
    def need(s, p):
        n = 0
        for age, h in enumerate(reversed(s.hist)):
            req = 0
            if h['k'] == 'm':
                if p['k'] == 'm':
                    if h['w'] & p['ab']: req = 12
                    elif h['w'] & p['c'] and h['w'] != p['c']: req = 10
                    elif h['w'] & p['w'] and h['w'] != p['c']: req = 12
                elif p['k'] != 'o' and h['w'] & (p['r'] | p['w']): req = 12
                if p['k'] == 'v' and h['c'] & p['w']: req = max(req, 7)
            elif h['k'] == 'v':
                if p['k'] == 'm' and h['w'] & p['r']: req = 2
                if p['op'].startswith('v_permlane') and h['w'] & p['r']: req = 2
                if p['op'].startswith('v_read') and h['w'] & p['r']: req = 1
                if h['op'] in TRANS and p['k'] == 'v' and h['w'] & p['r']: req = max(req, 1)
            elif h['wide'] and p['k'] in ('v', 'dr', 'vl') and h['sd'] & p['w']: req = 2
            n = max(n, req - age)
        return n
    def push(s, p):
        s.hist.append(p)
        if len(s.hist) > 24: s.hist.pop(0)
    def nop(s, n):
        while n > 0:
            k = min(n, 16); s.raw('  s_nop %d' % (k - 1))
            for _ in range(k): s.push(s.parse('s_nop'))
            n -= k
    def I(s, t):
        p = s.parse(t)
        touch = p['r'] | p['w']
        idx = -1
        for i, e in enumerate(s.lgk):
            if e & touch: idx = i
        if idx >= 0:
            cnt = min(15, len(s.lgk) - 1 - idx)
            s.raw('  s_waitcnt lgkmcnt(%d)' % cnt); s.push(s.parse('s_waitcnt'))
            s.lgk = s.lgk[len(s.lgk) - cnt:] if cnt else []
        s.nop(s.need(p))
        s.raw('  ' + t); s.push(p)
        if p['k'] == 'dr': s.lgk.append(set(p['w']))
        elif p['k'] == 'dw': s.lgk.append(set())
    def L(s, lines):
        for t in lines.strip().split('\n'):
            t = t.strip()
            if not t: continue
            if t.endswith(':'): s.raw(t)
            else: s.I(t)
    def waitlgk0(s):
        s.I('s_waitcnt lgkmcnt(0)'); s.lgk = []
    def fence(s):
        s.waitlgk0(); s.nop(14); s.hist = []
    def loop(s, body):
        s.fence(); d = s.dry; s.dry = True
        body(); body(); s.dry = d
        body()
```

```python
from em import Em
SLOT = 32768; NSLOT = 5; RING = SLOT * NSLOT
vKA = 2; vVA = 10; vL = 14; vX = 15; vM = 1
O = 16; Q = 80; S = 112; P = 144; KF = 160; VF = 192; XR = 80; WF = 208; T = 240
CS = 0.08838834764831845 * 1.4426950408889634
import struct
def f2h(x): return '0x%08x' % struct.unpack('<I', struct.pack('<f', x))[0]
def vr(b, n): return 'v[%d:%d]' % (b, b + n - 1)

def item_setup(e, br):
    e.L(f'''
    s_cmp_eq_u32 {br}, 0
    s_cselect_b32 s20, s44, s52
    s_cselect_b32 s21, s45, s53
    s_cselect_b32 s8, s46, s54
    s_cselect_b32 s9, s47, s55
    s_cselect_b32 s12, s48, s56
    s_cselect_b32 s13, s49, s57
    s_cselect_b32 s16, s50, s58
    s_cselect_b32 s17, s51, s59
    s_lshl_b32 s28, s5, 5
    s_add_u32 s28, s28, s4
    s_lshl_b32 s28, s28, 18
    s_add_u32 s8, s8, s28
    s_addc_u32 s9, s9, 0
    s_add_u32 s12, s12, s28
    s_addc_u32 s13, s13, 0
    s_lshl_b32 s28, s4, 8
    s_add_u32 s16, s16, s28
    s_addc_u32 s17, s17, 0
    s_sub_u32 s18, 0x400000, s28
    s_mul_i32 s28, s5, 229376
    s_add_u32 s20, s20, s28
    s_addc_u32 s21, s21, 0
    s_mul_i32 s28, {br}, 56
    s_mul_i32 s29, s5, 7
    s_add_u32 s28, s28, s29
    s_add_u32 s28, s28, s3
    s_lshl_b32 s28, s28, 18
    s_lshl_b32 s29, s4, 13
    s_add_u32 s28, s28, s29
    s_add_u32 s24, s60, s28
    s_addc_u32 s25, s61, 0
    ''')

def slot_adv(e, sreg):
    e.L(f'''
    s_add_u32 {sreg}, {sreg}, {SLOT}
    s_cmp_eq_u32 {sreg}, {RING}
    s_cselect_b32 {sreg}, 0, {sreg}
    ''')

def issue_w(e):
    for j in range(32):
        jp = (j & ~3) | ((j & 1) << 1) | ((j >> 1) & 1)
        e.I(f's_add_u32 m0, s37, {j * 1024}')
        e.I(f's_add_u32 s31, s30, {jp * 4 * 8192}')
        e.I('buffer_load_dwordx4 v255, s[16:19], s31 offen lds')
    e.I(f's_add_u32 s30, s30, {128 * 8192}')
    slot_adv(e, 's37')
def issue_kv(e):
    for g in range(4):
        for part, srd in ((0, 's[8:11]'), (1, 's[12:15]')):
            e.I(f's_add_u32 m0, s37, {part * 16384 + g * 4096}')
            e.I(f's_add_u32 s31, s30, {g * 4096}')
            for a in range(4):
                v = 250 + a if part == 0 else 254
                e.I(f'buffer_load_dwordx4 v{v}, {srd}, s31 offen offset:{a * 1024} lds')
    e.I('s_add_u32 s30, s30, 16384')
    slot_adv(e, 's37')
def loader_regs(e):
    e.L('v_lshrrev_b32 v16, 4, v0\nv_and_b32 v17, 15, v0')
    for a in range(4):
        e.L(f'''
        v_add_u32 v18, {4 * a}, v16
        v_xor_b32 v18, v18, v17
        v_lshlrev_b32 v18, 4, v18
        v_lshl_add_u32 v{250 + a}, v16, 8, v18
        ''')
    e.L('''
    v_lshlrev_b32 v18, 2, v16
    v_xor_b32 v18, v18, v17
    v_lshlrev_b32 v18, 4, v18
    v_lshl_add_u32 v254, v16, 8, v18
    v_lshl_add_u32 v255, v16, 13, v18
    ''')
def loader(e):
    e.L('''
    LD_STREAM:
    ''')
    item_setup(e, 's7')
    e.L('''
    s_mov_b32 s30, 0
    s_mov_b32 s36, 3
    LD_PRO:
    ''')
    issue_w(e)
    e.L('''
    s_sub_u32 s36, s36, 1
    s_cmp_lg_u32 s36, 0
    s_cbranch_scc1 LD_PRO
    s_mov_b32 s36, 1
    LD_WSTEP:
    s_waitcnt vmcnt(63)
    s_barrier
    ''')
    issue_w(e)
    e.L('''
    s_sub_u32 s36, s36, 1
    s_cmp_lg_u32 s36, 0
    s_cbranch_scc1 LD_WSTEP
    s_mov_b32 s30, 0
    s_mov_b32 s36, 16
    LD_KV:
    s_waitcnt vmcnt(63)
    s_barrier
    ''')
    issue_kv(e)
    e.L('''
    s_sub_u32 s36, s36, 1
    s_cmp_lg_u32 s36, 0
    s_cbranch_scc1 LD_KV
    s_sub_u32 s62, s62, 1
    s_cmp_eq_u32 s62, 0
    s_cbranch_scc1 LD_TAIL
    s_xor_b32 s7, s7, 1
    ''')
    item_setup(e, 's7')
    e.L('''
    s_mov_b32 s30, 0
    s_mov_b32 s36, 4
    s_branch LD_WSTEP
    LD_TAIL:
    s_waitcnt vmcnt(63)
    s_barrier
    s_waitcnt vmcnt(32)
    s_barrier
    s_waitcnt vmcnt(0)
    s_barrier
    s_branch DECIDE
    ''')

def kread(T_, ks): return f'ds_read_b128 {vr(KF + 4 * ks, 4)}, v{vKA + ks} offset:{T_ * 8192}'
def vread(T_, t, u, ee): return f'ds_read_b64_tr_b16 {vr(VF + 8 * t + 4 * u + 2 * ee, 2)}, v{vVA + t} offset:{16384 + T_ * 8192 + u * 4096 + ee * 2048}'
def qk(T_, ks):
    d = vr(S + 16 * T_, 16)
    return f'v_mfma_f32_32x32x16_bf16 {d}, {vr(KF + 4 * ks, 4)}, {vr(Q + 4 * ks, 4)}, {"0" if ks == 0 else d}'
def pv(T_, t, u):
    d = vr(O + 16 * t, 16)
    return f'v_mfma_f32_32x32x16_bf16 {d}, {vr(VF + 8 * t + 4 * u, 4)}, {vr(P + 8 * T_ + 4 * u, 4)}, {d}'
def sm(T_, sub=False):
    r = []; b = S + 16 * T_
    for i in range(0, 16, 2):
        if sub: r += [f'v_sub_f32 v{b + i}, v{b + i}, v{vM}', f'v_sub_f32 v{b + i + 1}, v{b + i + 1}, v{vM}']
        r += [f'v_exp_f32 v{b + i}, v{b + i}', f'v_exp_f32 v{b + i + 1}, v{b + i + 1}']
        if i >= 2:
            r += post(T_, i - 2)
    r += post(T_, 14)
    return r
def post(T_, i):
    b = S + 16 * T_
    return [f'v_add_f32 v{vL}, v{vL}, v{b + i}', f'v_add_f32 v{vX}, v{vX}, v{b + i + 1}',
            f'v_cvt_pk_bf16_f32 v{P + 8 * T_ + i // 2}, v{b + i}, v{b + i + 1}']
def weave(e, mf, fill, skip=0):
    n = len(mf); k = 0
    for i, (m, rd) in enumerate(mf):
        e.I(m)
        for x in rd: e.I(x)
        tgt = (len(fill) * max(0, i + 1 - skip)) // (n - skip)
        while k < tgt: e.I(fill[k]); k += 1
def adv_regs(e, base, n, sd):
    for i in range(n): e.I(f'v_add_u32 v{base + i}, {sd}, v{base + i}')
def delta(e, sreg, sd):
    e.L(f'''
    s_add_u32 {sd}, {sreg}, {SLOT}
    s_cmp_eq_u32 {sd}, {RING}
    s_cselect_b32 {sd}, 0, {sd}
    s_sub_u32 s29, {sd}, {sreg}
    s_mov_b32 {sreg}, {sd}
    s_mov_b32 {sd}, s29
    ''')
PVO = [(t, u) for u in range(2) for t in range(4)]
def phase_pv(e, T_, reload_T, fill, extra=None, skip=0):
    mf = []
    for i, (t, u) in enumerate(PVO):
        rd = [vread(reload_T, t, u, 0), vread(reload_T, t, u, 1)] if reload_T is not None else []
        if extra: rd = rd + [extra[i]]
        mf.append((pv(T_, t, u), rd))
    weave(e, mf, fill, skip)
def phase_qk(e, T_, reload_T, fill):
    weave(e, [(qk(T_, ks), [kread(reload_T, ks)] if reload_T is not None else []) for ks in range(8)], fill)

def kv_iter(e, first=False):
    s1 = sm(1); s0 = sm(0); h = len(s1) // 2
    e.I('s_barrier')
    if first:
        for ks in range(8): e.I(kread(0, ks))
        phase_qk(e, 0, 1, [])
        for t, u in PVO:
            e.I(vread(0, t, u, 0)); e.I(vread(0, t, u, 1))
        phase_qk(e, 1, None, s0)
    else:
        phase_pv(e, 0, 1, s1[:h], extra=[kread(0, ks) for ks in range(8)])
        delta(e, 's38', 's39'); adv_regs(e, vVA, 4, 's39')
        phase_qk(e, 0, 1, s1[h:])
        phase_pv(e, 1, 0, s0[:h], skip=2)
        phase_qk(e, 1, None, s0[h:])
    delta(e, 's37', 's39'); adv_regs(e, vKA, 8, 's39')
def kv_fast(e):
    kv_iter(e, first=True)
    e.I('s_mov_b32 s36, 15')
    def body():
        e.raw('KV_LOOP:')
        kv_iter(e)
        e.L('s_sub_u32 s36, s36, 1\ns_cmp_lg_u32 s36, 0\ns_cbranch_scc1 KV_LOOP')
    e.loop(body)
    s1 = sm(1)
    phase_pv(e, 0, 1, s1)
    delta(e, 's38', 's39'); adv_regs(e, vVA, 4, 's39')
    phase_pv(e, 1, None, [])
def kv_slow(e, mode):
    lab = f'KV_SLOW{mode}'
    e.I('s_mov_b32 s36, 16')
    def body():
        e.raw(lab + ':')
        e.I('s_barrier')
        for T_ in range(2):
            for ks in range(8): e.I(kread(T_, ks))
            for ks in range(8): e.I(qk(T_, ks))
            if mode == 1:
                for i in range(0, 16, 2): e.I(f'v_max3_f32 v{vM}, v{vM}, v{S + 16 * T_ + i}, v{S + 16 * T_ + i + 1}')
            else:
                for x in sm(T_, sub=True): e.I(x)
                for t, u in PVO:
                    e.I(vread(T_, t, u, 0)); e.I(vread(T_, t, u, 1))
                for t, u in PVO: e.I(pv(T_, t, u))
        e.waitlgk0()
        delta(e, 's37', 's39'); adv_regs(e, vKA, 8, 's39')
        delta(e, 's38', 's39'); adv_regs(e, vVA, 4, 's39')
        e.L(f's_sub_u32 s36, s36, 1\ns_cmp_lg_u32 s36, 0\ns_cbranch_scc1 {lab}')
    e.loop(body)
def wread(buf, t, u, ee): return f'ds_read_b64_tr_b16 {vr(WF + 16 * buf + 4 * t + 2 * ee, 2)}, v{vVA + t} offset:{u * 4096 + ee * 2048}'
def qproj(e):
    for i in range(4):
        e.I('s_barrier')
        for t in range(4):
            e.I(wread(0, t, 0, 0)); e.I(wread(0, t, 0, 1))
        e.I(f's_waitcnt vmcnt({24 - 8 * i})')
        for u in range(8):
            for t in range(4):
                d = vr(O + 16 * t, 16)
                c = '0' if (i == 0 and u == 0) else d
                e.I(f'v_mfma_f32_32x32x16_bf16 {d}, {vr(WF + 16 * (u & 1) + 4 * t, 4)}, {vr(XR + 4 * (8 * i + u), 4)}, {c}')
                if u < 7:
                    e.I(wread((u + 1) & 1, t, u + 1, 0)); e.I(wread((u + 1) & 1, t, u + 1, 1))
        delta(e, 's38', 's39'); adv_regs(e, vVA, 4, 's39')
    delta(e, 's37', 's39')
    for _ in range(3):
        e.I('s_mov_b32 s33, s39'); delta(e, 's37', 's39'); e.I('s_add_u32 s39, s39, s33')
    adv_regs(e, vKA, 8, 's39')
    for i in range(0, 64, 2):
        e.I(f'v_mul_f32 v{O + i}, s63, v{O + i}'); e.I(f'v_mul_f32 v{O + i + 1}, s63, v{O + i + 1}')
        e.I(f'v_cvt_pk_bf16_f32 v{Q + i // 2}, v{O + i}, v{O + i + 1}')
    for i in range(64): e.I(f'v_mov_b32 v{O + i}, 0')
    e.I(f'v_mov_b32 v{vL}, 0'); e.I(f'v_mov_b32 v{vX}, 0')
def xloads(e):
    for ks in range(32):
        e.I(f'buffer_load_dwordx4 {vr(XR + 4 * ks, 4)}, v{T}, s[20:23], 0 offen offset:{ks * 32}')
def swap_combine(e, v, op):
    e.L(f'''
    v_mov_b32 v{T + 2}, v{v}
    v_permlane32_swap_b32 v{v}, v{T + 2}
    {op} v{v}, v{v}, v{T + 2}
    ''')
def epilogue(e, check):
    e.I(f'v_add_f32 v{vL}, v{vL}, v{vX}')
    swap_combine(e, vL, 'v_add_f32')
    if check:
        e.L(f'''
        v_cmp_le_f32 vcc, {f2h(2.0 ** -30)}, v{vL}
        s_nop 4
        s_mov_b64 s[34:35], vcc
        v_cmp_ge_f32 vcc, {f2h(2.0 ** 30)}, v{vL}
        s_nop 4
        s_and_b64 vcc, vcc, s[34:35]
        s_cmp_eq_u64 vcc, -1
        s_cselect_b32 s33, 0, 1
        s_lshl_b32 s33, s33, s7
        s_or_b32 s40, s40, s33
        ''')
    e.I(f'v_rcp_f32 v{T + 3}, v{vL}')
    for t in range(4):
        for a in range(2):
            b = O + 16 * t + 8 * a; dst = WF + 4 * (2 * t + a)
            for i in range(8): e.I(f'v_mul_f32 v{b + i}, v{T + 3}, v{b + i}')
            for i in range(4): e.I(f'v_cvt_pk_bf16_f32 v{dst + i}, v{b + 2 * i}, v{b + 2 * i + 1}')
            ks = 2 * t + a
            e.I(f'buffer_store_dwordx4 {vr(dst, 4)}, v{T + 1}, s[24:27], {"s64" if ks >= 4 else "0"} offen offset:{(ks & 3) * 1024}')

def kernel(e, name):
    e.L(f'''
    s_cmp_ge_u32 s2, 256
    s_cbranch_scc1 K1_EXIT
    s_load_dwordx8 s[44:51], s[0:1], 0
    s_load_dwordx8 s[52:59], s[0:1], 40
    s_load_dwordx2 s[60:61], s[0:1], 96
    v_lshrrev_b32 v1, 6, v0
    v_and_b32 v0, 63, v0
    s_and_b32 s28, s2, 7
    v_readfirstlane_b32 s3, v1
    s_lshr_b32 s29, s2, 3
    s_and_b32 s4, s29, 3
    s_lshl_b32 s28, s28, 2
    s_add_u32 s4, s4, s28
    s_lshr_b32 s5, s29, 2
    s_mov_b32 s10, 0x40000
    s_mov_b32 s11, 0x20000
    s_mov_b32 s14, 0x40000
    s_mov_b32 s15, 0x20000
    s_mov_b32 s19, 0x20000
    s_mov_b32 s22, 229376
    s_mov_b32 s23, 0x20000
    s_mov_b32 s26, 8192
    s_mov_b32 s27, 0x20000
    s_mov_b32 s63, {f2h(CS)}
    s_mov_b32 s64, 4096
    s_mov_b32 s7, 0
    s_mov_b32 s37, 0
    s_mov_b32 s38, 0
    s_mov_b32 s40, 0
    s_mov_b32 s41, 0
    s_mov_b32 s62, 2
    s_mov_b32 s65, 0
    s_waitcnt lgkmcnt(0)
    ''')
    e.L(f'''
    v_and_b32 v{T + 4}, 31, v0
    v_lshrrev_b32 v{T + 5}, 5, v0
    v_and_b32 v{T + 6}, 15, v0
    v_lshlrev_b32 v{T + 7}, 8, v{T + 4}
    ''')
    for ks in range(8):
        e.L(f'''
        v_add_u32 v{T + 8}, {2 * ks}, v{T + 5}
        v_xor_b32 v{T + 8}, v{T + 8}, v{T + 6}
        v_lshl_add_u32 v{vKA + ks}, v{T + 8}, 4, v{T + 7}
        ''')
    e.L(f'''
    v_bfe_u32 v{T + 8}, v0, 2, 2
    v_lshl_add_u32 v{T + 9}, v{T + 5}, 2, v{T + 8}
    v_lshlrev_b32 v{T + 9}, 8, v{T + 9}
    v_bfe_u32 v{T + 10}, v0, 4, 1
    v_lshl_add_u32 v{T + 9}, v{T + 10}, 5, v{T + 9}
    v_and_b32 v{T + 10}, 1, v0
    v_lshl_add_u32 v{T + 9}, v{T + 10}, 4, v{T + 9}
    v_bfe_u32 v{T + 10}, v0, 1, 1
    v_lshl_add_u32 v{T + 9}, v{T + 10}, 3, v{T + 9}
    ''')
    for t in range(4):
        e.L(f'''
        v_xor_b32 v{T + 10}, {t}, v{T + 8}
        v_lshl_add_u32 v{vVA + t}, v{T + 10}, 6, v{T + 9}
        ''')
    e.L(f'''
    s_lshl_b32 s28, s3, 5
    v_add_u32 v{T + 4}, s28, v{T + 4}
    v_lshlrev_b32 v{T + 4}, 10, v{T + 4}
    v_lshl_add_u32 v{T}, v{T + 5}, 4, v{T + 4}
    v_lshlrev_b32 v{T + 1}, 4, v0
    ''')
    loader_regs(e)
    e.L('s_cmp_eq_u32 s3, 7\ns_cbranch_scc0 ITEM')
    loader(e)
    e.raw('ITEM:')
    item_setup(e, 's7')
    xloads(e)
    e.fence()
    qproj(e)
    e.L('''
    s_cmp_eq_u32 s65, 1
    s_cbranch_scc1 MODE1
    s_cmp_eq_u32 s65, 2
    s_cbranch_scc1 MODE2
    ''')
    e.fence()
    kv_fast(e)
    e.fence()
    epilogue(e, True)
    e.I('s_branch ITEM_END')
    e.raw('MODE1:'); e.fence()
    e.I(f'v_mov_b32 v{vM}, 0xff800000')
    kv_slow(e, 1)
    e.fence()
    swap_combine(e, vM, 'v_max_f32')
    e.I('s_branch ITEM_END')
    e.raw('MODE2:'); e.fence()
    kv_slow(e, 2)
    e.fence()
    epilogue(e, False)
    e.raw('ITEM_END:'); e.fence()
    e.L('''
    s_sub_u32 s62, s62, 1
    s_cmp_eq_u32 s62, 0
    s_cbranch_scc1 ITEMS_DONE
    s_xor_b32 s7, s7, 1
    s_branch ITEM
    ITEMS_DONE:
    ''')
    e.L(f'''
    DECIDE:
    s_cmp_lg_u32 s65, 0
    s_cbranch_scc1 NEXT_REDO
    s_barrier
    v_mov_b32 v{T + 4}, s40
    s_lshl_b32 s28, s3, 2
    v_mov_b32 v{T + 5}, s28
    ds_write_b32 v{T + 5}, v{T + 4}
    s_waitcnt lgkmcnt(0)
    s_barrier
    v_and_b32 v{T + 5}, 7, v0
    v_lshlrev_b32 v{T + 5}, 2, v{T + 5}
    ds_read_b32 v{T + 4}, v{T + 5}
    s_waitcnt lgkmcnt(0)
    v_and_b32 v{T + 5}, 1, v{T + 4}
    v_cmp_ne_u32 vcc, 0, v{T + 5}
    v_and_b32 v{T + 5}, 2, v{T + 4}
    s_nop 4
    s_cmp_lg_u64 vcc, 0
    s_cselect_b32 s41, 1, 0
    v_cmp_ne_u32 vcc, 0, v{T + 5}
    s_nop 4
    s_cmp_lg_u64 vcc, 0
    s_cselect_b32 s28, 2, 0
    s_or_b32 s41, s41, s28
    s_barrier
    s_mov_b32 s65, 2
    NEXT_REDO:
    s_cmp_eq_u32 s65, 1
    s_cbranch_scc1 REDO_PASS2
    s_cmp_eq_u32 s41, 0
    s_cbranch_scc1 K1_DONE
    s_and_b32 s28, s41, 1
    s_cselect_b32 s7, 0, 1
    s_cselect_b32 s28, 1, 2
    s_xor_b32 s41, s41, s28
    s_mov_b32 s65, 1
    s_branch REDO_GO
    REDO_PASS2:
    s_mov_b32 s65, 2
    REDO_GO:
    s_mov_b32 s62, 1
    s_barrier
    s_cmp_eq_u32 s3, 7
    s_cbranch_scc1 LD_STREAM
    s_branch ITEM
    K1_DONE:
    s_waitcnt vmcnt(0)
    K1_EXIT:
    s_endpgm
    ''')
```

```python
from em import Em
from k1 import vr
BF = 16; AF = 144; T = 176
def ar(b, n): return 'a[%d:%d]' % (b, b + n - 1)
def acc(t, i): return ar(16 * (2 * i + t), 16)
def loads(e, slot, part):
    if part < 2:
        for i in range(4):
            e.I(f'buffer_load_dwordx4 {vr(BF + 32 * slot + 16 * part + 4 * i, 4)}, v{4 + i}, s[8:11], s30 offen offset:{part * 1024}')
    else:
        e.I(f's_add_u32 m0, s33, {slot * 4096}')
        for j in range(4):
            if j: e.I(f's_add_u32 m0, s33, {slot * 4096 + j * 1024}')
            e.I(f's_add_u32 s32, s31, {j * 8192}')
            e.I('buffer_load_dwordx4 v8, s[12:15], s32 offen lds')
        e.I('s_add_u32 s30, s30, 2048'); e.I('s_add_u32 s31, s31, 32768')
def areads(e, slot, buf):
    r = []
    for u in range(2):
        for t in range(2):
            for ee in range(2):
                r.append(f'ds_read_b64_tr_b16 {vr(AF + 16 * buf + 8 * u + 4 * t + 2 * ee, 2)}, v{2 + t} offset:{slot * 4096 + u * 2048 + ee * 512}')
    return r
def step(e, d, first=False, pre=True, nxt=True, wait=24):
    slot = d & 3; buf = d & 1
    if nxt:
        e.I(f's_waitcnt vmcnt({wait})')
        rd = areads(e, (d + 1) & 3, buf ^ 1)
    else: rd = []
    k = 0
    for u in range(2):
        for i in range(4):
            for t in range(2):
                c = '0' if (first and u == 0) else acc(t, i)
                e.I(f'v_mfma_f32_32x32x16_bf16 {acc(t, i)}, {vr(AF + 16 * buf + 8 * u + 4 * t, 4)}, {vr(BF + 32 * slot + 16 * u + 4 * i, 4)}, {c}')
                if k < len(rd): e.I(rd[k]); k += 1
        if pre: loads(e, slot, u)
    if pre: loads(e, slot, 2)
def kernel(e):
    e.L(f'''
    s_cmp_ge_u32 s2, 224
    s_cbranch_scc1 K2_EXIT
    s_load_dwordx2 s[44:45], s[0:1], 32
    s_load_dwordx2 s[46:47], s[0:1], 72
    s_load_dwordx2 s[48:49], s[0:1], 80
    s_load_dwordx2 s[60:61], s[0:1], 96
    v_lshrrev_b32 v1, 6, v0
    v_and_b32 v0, 63, v0
    s_and_b32 s28, s2, 7
    v_readfirstlane_b32 s3, v1
    s_lshr_b32 s29, s2, 3
    s_mul_i32 s28, s28, 28
    s_add_u32 s28, s28, s29
    s_lshr_b32 s5, s28, 3
    s_and_b32 s4, s28, 7
    s_cmp_ge_u32 s5, 14
    s_cselect_b32 s7, 1, 0
    s_waitcnt lgkmcnt(0)
    s_cselect_b32 s12, s46, s44
    s_cselect_b32 s13, s47, s45
    s_lshl_b32 s28, s3, 20
    s_lshl_b32 s29, s4, 7
    s_add_u32 s28, s28, s29
    s_add_u32 s12, s12, s28
    s_addc_u32 s13, s13, 0
    s_sub_u32 s14, 0x400000, s28
    s_mov_b32 s15, 0x20000
    s_lshl_b32 s28, s5, 20
    s_lshl_b32 s29, s3, 16
    s_add_u32 s28, s28, s29
    s_add_u32 s8, s60, s28
    s_addc_u32 s9, s61, 0
    s_mov_b32 s10, {3 * 262144 + 65536}
    s_mov_b32 s11, 0x20000
    s_mul_i32 s28, s7, 14
    s_sub_u32 s28, s5, s28
    s_lshl_b32 s28, s28, 2
    s_add_u32 s28, s28, s3
    s_lshl_b32 s28, s28, 16
    s_lshl_b32 s29, s7, 10
    s_add_u32 s28, s28, s29
    s_lshl_b32 s29, s4, 7
    s_add_u32 s28, s28, s29
    s_add_u32 s16, s48, s28
    s_addc_u32 s17, s49, 0
    s_mov_b32 s18, {31 * 2048 + 128}
    s_mov_b32 s19, 0x20000
    s_lshl_b32 s33, s3, 14
    s_mov_b32 s30, 0
    s_mov_b32 s31, 0
    v_lshlrev_b32 v4, 4, v0
    v_add_u32 v5, 0x40000, v4
    v_add_u32 v6, 0x80000, v4
    v_add_u32 v7, 0xc0000, v4
    v_lshrrev_b32 v{T}, 3, v0
    v_bfe_u32 v{T + 1}, v0, 4, 1
    v_lshlrev_b32 v{T + 1}, 2, v{T + 1}
    v_and_b32 v{T + 2}, 7, v0
    v_xor_b32 v{T + 1}, v{T + 1}, v{T + 2}
    v_lshlrev_b32 v{T + 1}, 4, v{T + 1}
    v_lshl_add_u32 v8, v{T}, 10, v{T + 1}
    v_bfe_u32 v{T}, v0, 2, 2
    v_lshrrev_b32 v{T + 1}, 5, v0
    v_lshlrev_b32 v{T + 2}, 7, v{T}
    v_lshl_add_u32 v{T + 2}, v{T + 1}, 10, v{T + 2}
    v_bfe_u32 v{T + 3}, v0, 4, 1
    v_lshl_add_u32 v{T + 2}, v{T + 3}, 5, v{T + 2}
    v_and_b32 v{T + 3}, 1, v0
    v_lshl_add_u32 v{T + 2}, v{T + 3}, 4, v{T + 2}
    v_bfe_u32 v{T + 3}, v0, 1, 1
    v_lshl_add_u32 v{T + 2}, v{T + 3}, 3, v{T + 2}
    v_add_u32 v{T + 2}, s33, v{T + 2}
    v_lshrrev_b32 v{T}, 1, v{T}
    v_lshl_add_u32 v2, v{T}, 6, v{T + 2}
    v_xor_b32 v{T}, 1, v{T}
    v_lshl_add_u32 v3, v{T}, 6, v{T + 2}
    v_and_b32 v{T}, 31, v0
    v_lshlrev_b32 v{T}, 11, v{T}
    v_lshl_add_u32 v9, v{T + 1}, 4, v{T}
    ''')
    for d in range(4):
        for p in range(3): loads(e, d, p)
    e.I('s_waitcnt vmcnt(36)')
    for x in areads(e, 0, 0): e.I(x)
    step(e, 0, first=True); step(e, 1); step(e, 2); step(e, 3)
    e.I('s_mov_b32 s36, 6')
    def body():
        e.raw('K2_LOOP:')
        for d in range(4): step(e, d)
        e.L('s_sub_u32 s36, s36, 1\ns_cmp_lg_u32 s36, 0\ns_cbranch_scc1 K2_LOOP')
    e.loop(body)
    step(e, 0, pre=False, wait=24); step(e, 1, pre=False, wait=12); step(e, 2, pre=False, wait=0); step(e, 3, pre=False, nxt=False)
    e.fence()
    e.L(f'''
    s_barrier
    v_lshlrev_b32 v10, 4, v0
    s_lshl_b32 s28, s3, 15
    v_add_u32 v11, s28, v10
    ''')
    for i in range(4):
        for t in range(2):
            for j in range(4):
                e.I(f'ds_write_b128 v11, {ar(16 * (2 * i + t) + 4 * j, 4)} offset:{i * 8192 + t * 4096 + j * 1024}')
    e.waitlgk0()
    e.L(f'''
    s_barrier
    s_lshl_b32 s28, s3, 13
    v_add_u32 v11, s28, v10
    v_add_u32 v12, 0x10000, v11
    ''')
    for w in range(4):
        for x in range(8):
            e.I(f'ds_read_b128 {vr(16 + 32 * w + 4 * x, 4)}, v{11 + (w >> 1)} offset:{(w & 1) * 32768 + x * 1024}')
    for r in range(32):
        e.I(f'v_add_f32 v{16 + r}, v{16 + r}, v{48 + r}')
        e.I(f'v_add_f32 v{80 + r}, v{80 + r}, v{112 + r}')
        e.I(f'v_add_f32 v{16 + r}, v{16 + r}, v{80 + r}')
    for t in range(2):
        for a in range(2):
            b = 16 + 16 * t + 8 * a; dst = 144 + 4 * (2 * t + a)
            for i in range(4): e.I(f'v_cvt_pk_bf16_f32 v{dst + i}, v{b + 2 * i}, v{b + 2 * i + 1}')
            e.I(f'buffer_store_dwordx4 {vr(dst, 4)}, v9, s[16:19], 0 offen offset:{t * 64 + a * 32}')
    e.L('''
    s_waitcnt vmcnt(0)
    K2_EXIT:
    s_endpgm
    ''')
```

```python
import sys
from em import Em
import k1, k2
N = 'concat_heads__mha_block_cached__gqa_block_cached__near_ridge'
ref = open('cdna_kernels/%s.s.ref' % N).read().split('\n')
hdr = [l for l in ref if l.startswith(';') and '@launch' not in l and 'Override' not in l and 'grid=ceil' not in l and l.startswith(';   ') | l.startswith('; Kernarg')]
def kd(name, nv, acc):
    return f'''.amdhsa_kernel {name}
  .amdhsa_next_free_vgpr {nv}
  .amdhsa_next_free_sgpr 102
  .amdhsa_accum_offset {acc}
  .amdhsa_group_segment_fixed_size 0
  .amdhsa_kernarg_size 104
  .amdhsa_user_sgpr_count 2
  .amdhsa_user_sgpr_kernarg_segment_ptr 1
  .amdhsa_system_sgpr_workgroup_id_x 1
.end_amdhsa_kernel'''
def fn(name, f):
    e = Em(); f(e)
    return f'.globl {name}\n.p2align 8\n.type {name},@function\n{name}:\n' + '\n'.join(e.out)
out = hdr + ['; @launch kernel=attn_kernel grid=(256,1,1) block=(512,1,1) lds=159744',
             '; @launch kernel=oproj_kernel grid=(224,1,1) block=(256,1,1) lds=131072',
             '.amdgcn_target "amdgcn-amd-amdhsa--gfx950"', '.text',
             fn('attn_kernel', lambda e: k1.kernel(e, 'attn_kernel')), fn('oproj_kernel', k2.kernel),
             '.section .rodata,"a"', '.p2align 6', kd('attn_kernel', 256, 256), '.p2align 6', kd('oproj_kernel', 384, 256)]
dst = sys.argv[1] if len(sys.argv) > 1 else 'cdna_kernels/%s.s' % N
open(dst, 'w').write('\n'.join(out) + '\n')
```

```python
from em import Em
import os
EXP = os.environ.get('EXP', '').split(',')
SLOT = 32768; NSLOT = 4; RING = SLOT * NSLOT; XST = RING
vKA = 2; vVA = 10; vL = 14; vX = 15; vM = 1
O = 16; Q = 80; S = 112; KF = 144; VF = 176; XR = 112; WF = 144; OB = 144; T = 240
CS = 0.08838834764831845 * 1.4426950408889634
import struct
def f2h(x): return '0x%08x' % struct.unpack('<I', struct.pack('<f', x))[0]
def vr(b, n): return 'v[%d:%d]' % (b, b + n - 1)

def item_setup(e, br):
    e.L(f'''
    s_cmp_eq_u32 {br}, 0
    s_cselect_b32 s8, s46, s54
    s_cselect_b32 s9, s47, s55
    s_cselect_b32 s12, s48, s56
    s_cselect_b32 s13, s49, s57
    s_cselect_b32 s16, s50, s58
    s_cselect_b32 s17, s51, s59
    s_lshl_b32 s28, s5, 5
    s_add_u32 s28, s28, s4
    s_lshl_b32 s28, s28, 18
    s_add_u32 s8, s8, s28
    s_addc_u32 s9, s9, 0
    s_add_u32 s12, s12, s28
    s_addc_u32 s13, s13, 0
    s_lshl_b32 s28, s4, 8
    s_add_u32 s16, s16, s28
    s_addc_u32 s17, s17, 0
    s_sub_u32 s18, 0x400000, s28
    s_mul_i32 s28, {br}, 56
    s_mul_i32 s29, s5, 7
    s_add_u32 s28, s28, s29
    s_add_u32 s28, s28, s3
    s_lshl_b32 s28, s28, 18
    s_lshl_b32 s29, s4, 13
    s_add_u32 s28, s28, s29
    s_add_u32 s24, s60, s28
    s_addc_u32 s25, s61, 0
    ''')

def slot_adv(e, sreg):
    e.L(f'''
    s_add_u32 {sreg}, {sreg}, {SLOT}
    s_cmp_eq_u32 {sreg}, {RING}
    s_cselect_b32 {sreg}, 0, {sreg}
    ''')

NT = '' if 'nont' in EXP else ' nt'
def issue_w(e):
    for j in range(32):
        jp = (j & ~3) | ((j & 1) << 1) | ((j >> 1) & 1)
        e.I(f's_add_u32 m0, s37, {j * 1024}')
        e.I(f's_add_u32 s31, s30, {jp * 4 * 8192}')
        if 'noload' not in EXP: e.I('buffer_load_dwordx4 v255, s[16:19], s31 offen lds')
    e.I(f's_add_u32 s30, s30, {128 * 8192}')
    slot_adv(e, 's37')
def issue_kv(e):
    for g in range(4):
        for part, srd in ((0, 's[8:11]'), (1, 's[12:15]')):
            e.I(f's_add_u32 m0, s37, {part * 16384 + g * 4096}')
            e.I(f's_add_u32 s31, s30, {g * 4096}')
            for a in range(4):
                v = 250 + a if part == 0 else 254
                if 'noload' not in EXP: e.I(f'buffer_load_dwordx4 v{v}, {srd}, s31 offen offset:{a * 1024}' + NT + ' lds')
    e.I('s_add_u32 s30, s30, 16384')
    slot_adv(e, 's37')
def loader_regs(e):
    e.L('v_lshrrev_b32 v16, 4, v0\nv_and_b32 v17, 15, v0')
    for a in range(4):
        e.L(f'''
        v_add_u32 v18, {4 * a}, v16
        v_xor_b32 v18, v18, v17
        v_lshlrev_b32 v18, 4, v18
        v_lshl_add_u32 v{250 + a}, v16, 8, v18
        ''')
    e.L('''
    v_lshlrev_b32 v18, 2, v16
    v_xor_b32 v18, v18, v17
    v_lshlrev_b32 v18, 4, v18
    v_lshl_add_u32 v254, v16, 8, v18
    v_lshl_add_u32 v255, v16, 13, v18
    ''')
def loader(e):
    e.L('''
    s_setprio 3
    LD_STREAM:
    ''')
    item_setup(e, 's7')
    e.L('''
    s_mov_b32 s30, 0
    s_mov_b32 s36, 3
    LD_PRO:
    ''')
    issue_w(e)
    e.L('''
    s_sub_u32 s36, s36, 1
    s_cmp_lg_u32 s36, 0
    s_cbranch_scc1 LD_PRO
    s_mov_b32 s36, 1
    LD_WSTEP:
    s_waitcnt vmcnt(63)
    s_barrier
    ''')
    issue_w(e)
    e.L('''
    s_sub_u32 s36, s36, 1
    s_cmp_lg_u32 s36, 0
    s_cbranch_scc1 LD_WSTEP
    s_mov_b32 s30, 0
    s_mov_b32 s36, 16
    LD_KV:
    s_waitcnt vmcnt(63)
    s_barrier
    ''')
    issue_kv(e)
    e.L('''
    s_sub_u32 s36, s36, 1
    s_cmp_lg_u32 s36, 0
    s_cbranch_scc1 LD_KV
    s_sub_u32 s62, s62, 1
    s_cmp_eq_u32 s62, 0
    s_cbranch_scc1 LD_TAIL
    s_xor_b32 s7, s7, 1
    ''')
    item_setup(e, 's7')
    e.L('''
    s_mov_b32 s30, 0
    s_mov_b32 s36, 4
    s_branch LD_WSTEP
    LD_TAIL:
    s_waitcnt vmcnt(63)
    s_barrier
    s_waitcnt vmcnt(32)
    s_barrier
    s_waitcnt vmcnt(0)
    s_barrier
    s_branch DECIDE
    ''')

def kread(T_, ks): return f'ds_read_b128 {vr(KF + 4 * ks, 4)}, v{vKA + ks} offset:{T_ * 8192}'
def vread(T_, t, u, ee): return f'ds_read_b64_tr_b16 {vr(VF + 32 * T_ + 8 * t + 4 * u + 2 * ee, 2)}, v{vVA + t} offset:{16384 + T_ * 8192 + u * 4096 + ee * 2048}'
def qk(T_, ks):
    d = vr(S + 16 * T_, 16)
    return f'v_mfma_f32_32x32x16_bf16 {d}, {vr(KF + 4 * ks, 4)}, {vr(Q + 4 * ks, 4)}, {"0" if ks == 0 else d}'
def pv(T_, t, u):
    d = vr(O + 16 * t, 16)
    return f'v_mfma_f32_32x32x16_bf16 {d}, {vr(VF + 32 * T_ + 8 * t + 4 * u, 4)}, {vr(S + 16 * T_ + 4 * u, 4)}, {d}'
def sm(T_, sub=False):
    r = []; b = S + 16 * T_
    for i in range(0, 16, 2):
        if sub: r += [f'v_sub_f32 v{b + i}, v{b + i}, v{vM}', f'v_sub_f32 v{b + i + 1}, v{b + i + 1}, v{vM}']
        r += [f'v_exp_f32 v{b + i}, v{b + i}', f'v_exp_f32 v{b + i + 1}, v{b + i + 1}']
        if i >= 2:
            r += post(T_, i - 2)
    r += post(T_, 14)
    return r
def post(T_, i):
    b = S + 16 * T_
    return [f'v_add_f32 v{vL}, v{vL}, v{b + i}', f'v_add_f32 v{vX}, v{vX}, v{b + i + 1}',
            f'v_cvt_pk_bf16_f32 v{S + 16 * T_ + i // 2}, v{b + i}, v{b + i + 1}']
def weave(e, mf, fill, skip=0):
    n = len(mf); k = 0
    for i, (m, rd) in enumerate(mf):
        e.I(m)
        for x in rd: e.I(x)
        tgt = (len(fill) * max(0, i + 1 - skip)) // (n - skip)
        while k < tgt: e.I(fill[k]); k += 1
def adv_regs(e, base, n, sd):
    for i in range(n): e.I(f'v_add_u32 v{base + i}, {sd}, v{base + i}')
def delta(e, sreg, sd):
    e.L(f'''
    s_add_u32 {sd}, {sreg}, {SLOT}
    s_cmp_eq_u32 {sd}, {RING}
    s_cselect_b32 {sd}, 0, {sd}
    s_sub_u32 s29, {sd}, {sreg}
    s_mov_b32 {sreg}, {sd}
    s_mov_b32 {sd}, s29
    ''')
PVO = [(t, u) for u in range(2) for t in range(4)]
def phase_pv(e, T_, reload_T, fill, extra=None, skip=0):
    mf = []
    for i, (t, u) in enumerate(PVO):
        rd = [vread(reload_T, t, u, 0), vread(reload_T, t, u, 1)] if reload_T is not None else []
        if extra: rd = rd + [extra[i]]
        mf.append((pv(T_, t, u), rd))
    weave(e, mf, fill, skip)
def phase_qk(e, T_, reload_T, fill):
    weave(e, [(qk(T_, ks), [kread(reload_T, ks)] if reload_T is not None else []) for ks in range(8)], fill)

def phase(e, mfs, reads, fill, skip=0, rf=None):
    n = len(mfs); rf = rf or n
    per = [reads[(len(reads) * i) // rf:(len(reads) * (i + 1)) // rf] if i < rf else [] for i in range(n)]
    weave(e, list(zip(mfs, per)), fill, skip)
def vreads(T_): return [vread(T_, t, u, ee) for t, u in PVO for ee in range(2)]
def kreads(T_): return [kread(T_, ks) for ks in range(8)]
def qks(T_): return [qk(T_, ks) for ks in range(8)]
def pvs(T_): return [pv(T_, t, u) for t, u in PVO]
def adv_slot(e):
    delta(e, 's37', 's39'); adv_regs(e, vKA, 12, 's39')
def kv_iter(e, first=False):
    s1 = sm(1); s0 = sm(0); h = len(s1) // 2
    e.I('s_barrier')
    if 'nocomp' in EXP: return
    if first:
        for x in kreads(0): e.I(x)
        phase(e, qks(0), kreads(1), [])
        for x in vreads(0): e.I(x)
        phase(e, qks(1), vreads(1), s0, skip=1, rf=5)
    else:
        phase(e, pvs(0), kreads(0), s1[:h])
        phase(e, qks(0), kreads(1), s1[h:])
        phase(e, pvs(1), vreads(0), s0[:h], skip=2)
        phase(e, qks(1), vreads(1), s0[h:], rf=5)
    adv_slot(e)
    e.waitlgk0()
def kv_fast(e):
    kv_iter(e, first=True)
    stamp(e, 3)
    e.I('s_mov_b32 s36, 15')
    def body():
        e.raw('KV_LOOP:')
        kv_iter(e)
        e.L('s_sub_u32 s36, s36, 1\ns_cmp_lg_u32 s36, 0\ns_cbranch_scc1 KV_LOOP')
    e.loop(body)
    phase(e, pvs(0), [], sm(1))
    e.I('s_xor_b32 s34, s7, 1'); xsrd(e, 's34')
    xchunk_dma(e, 0)
    phase(e, pvs(1), [], [])
def kv_slow(e, mode):
    lab = f'KV_SLOW{mode}'
    e.I('s_mov_b32 s36, 16')
    def body():
        e.raw(lab + ':')
        e.I('s_barrier')
        for T_ in range(2):
            for ks in range(8): e.I(kread(T_, ks))
            for ks in range(8): e.I(qk(T_, ks))
            if mode == 1:
                for i in range(0, 16, 2): e.I(f'v_max3_f32 v{vM}, v{vM}, v{S + 16 * T_ + i}, v{S + 16 * T_ + i + 1}')
            else:
                for x in sm(T_, sub=True): e.I(x)
                for t, u in PVO:
                    e.I(vread(T_, t, u, 0)); e.I(vread(T_, t, u, 1))
                for t, u in PVO: e.I(pv(T_, t, u))
        e.waitlgk0()
        adv_slot(e)
        e.L(f's_sub_u32 s36, s36, 1\ns_cmp_lg_u32 s36, 0\ns_cbranch_scc1 {lab}')
    e.loop(body)
def wread(buf, t, u, ee): return f'ds_read_b64_tr_b16 {vr(WF + 16 * buf + 4 * t + 2 * ee, 2)}, v{vVA + t} offset:{u * 4096 + ee * 2048}'
def xchunk_dma(e, c):
    for j in range(4):
        e.I(f's_add_u32 m0, s66, {j * 1024}')
        e.I(f's_mov_b32 s31, {j * 8192 + c * 128}')
        e.I(f'buffer_load_dwordx4 v{T + 4 * (j & 1)}, s[20:23], s31 offen lds')
def xchunk_read(e, buf):
    for ks in range(4): e.I(f'ds_read_b128 {vr(XR + 16 * buf + 4 * ks, 4)}, v{T + 5 + ks}')
def qproj(e):
    for i in range(4):
        e.I('s_barrier')
        if 'nocomp' in EXP: continue
        for t in range(4):
            e.I(wread(0, t, 0, 0)); e.I(wread(0, t, 0, 1))
        if i == 0:
            e.I('s_waitcnt vmcnt(8)')
            stamp(e, 1)
            xchunk_read(e, 0); e.waitlgk0(); xchunk_dma(e, 1)
        for u in range(8):
            c = 2 * i + (u >> 2)
            for t in range(4):
                d = vr(O + 16 * t, 16)
                cc = '0' if (i == 0 and u == 0) else d
                e.I(f'v_mfma_f32_32x32x16_bf16 {d}, {vr(WF + 16 * (u & 1) + 4 * t, 4)}, {vr(XR + 16 * (c & 1) + 4 * (u & 3), 4)}, {cc}')
                if u < 7:
                    e.I(wread((u + 1) & 1, t, u + 1, 0)); e.I(wread((u + 1) & 1, t, u + 1, 1))
                if (u & 3) == 2 and t == 3 and c < 7:
                    e.I('s_waitcnt vmcnt(0)'); xchunk_read(e, (c + 1) & 1)
                if (u & 3) == 3 and t == 1 and c < 6:
                    e.waitlgk0(); xchunk_dma(e, c + 2)
        adv_slot(e)
    for i in range(0, 64, 2):
        e.I(f'v_mul_f32 v{O + i}, s63, v{O + i}'); e.I(f'v_mul_f32 v{O + i + 1}, s63, v{O + i + 1}')
        e.I(f'v_cvt_pk_bf16_f32 v{Q + i // 2}, v{O + i}, v{O + i + 1}')
    for i in range(64): e.I(f'v_mov_b32 v{O + i}, 0')
    e.I(f'v_mov_b32 v{vL}, 0'); e.I(f'v_mov_b32 v{vX}, 0')
def xsrd(e, br):
    e.L(f'''
    s_cmp_eq_u32 {br}, 0
    s_cselect_b32 s20, s44, s52
    s_cselect_b32 s21, s45, s53
    s_mul_i32 s28, s5, 229376
    s_add_u32 s20, s20, s28
    s_addc_u32 s21, s21, 0
    ''')
def stamp(e, idx):
    if 'stamp' not in EXP: return
    e.L(f'''
    s_memtime s[70:71]
    s_lshl_b32 s31, s7, 3
    s_add_u32 m0, s31, {idx}
    s_waitcnt lgkmcnt(0)
    s_nop 4
    v_writelane_b32 v1, s70, m0
    ''')
def swap_combine(e, v, op):
    e.L(f'''
    v_mov_b32 v{T + 2}, v{v}
    v_permlane32_swap_b32 v{v}, v{T + 2}
    {op} v{v}, v{v}, v{T + 2}
    ''')
def epilogue(e, check):
    e.I(f'v_add_f32 v{vL}, v{vL}, v{vX}')
    swap_combine(e, vL, 'v_add_f32')
    if check:
        e.L(f'''
        v_cmp_le_f32 vcc, {f2h(2.0 ** -30)}, v{vL}
        s_nop 4
        s_mov_b64 s[34:35], vcc
        v_cmp_ge_f32 vcc, {f2h(2.0 ** 30)}, v{vL}
        s_nop 4
        s_and_b64 vcc, vcc, s[34:35]
        s_cmp_eq_u64 vcc, -1
        s_cselect_b32 s33, 0, 1
        s_lshl_b32 s33, s33, s7
        s_or_b32 s40, s40, s33
        ''')
    e.I(f'v_rcp_f32 v{T + 3}, v{vL}')
    for t in range(4):
        for a in range(2):
            b = O + 16 * t + 8 * a; dst = OB + 4 * (2 * t + a)
            for i in range(8): e.I(f'v_mul_f32 v{b + i}, v{T + 3}, v{b + i}')
            for i in range(4): e.I(f'v_cvt_pk_bf16_f32 v{dst + i}, v{b + 2 * i}, v{b + 2 * i + 1}')
            ks = 2 * t + a
            e.I(f'buffer_store_dwordx4 {vr(dst, 4)}, v{T + 1}, s[24:27], {"s64" if ks >= 4 else "0"} offen offset:{(ks & 3) * 1024}')

def kernel(e, name):
    e.L(f'''
    s_cmp_ge_u32 s2, 256
    s_cbranch_scc1 K1_EXIT
    s_load_dwordx8 s[44:51], s[0:1], 0
    s_load_dwordx8 s[52:59], s[0:1], 40
    s_load_dwordx2 s[60:61], s[0:1], 96
    v_lshrrev_b32 v1, 6, v0
    v_and_b32 v0, 63, v0
    s_and_b32 s28, s2, 7
    v_readfirstlane_b32 s3, v1
    s_lshr_b32 s29, s2, 3
    s_and_b32 s4, s29, 3
    s_lshl_b32 s28, s28, 2
    s_add_u32 s4, s4, s28
    s_lshr_b32 s5, s29, 2
    s_mov_b32 s10, 0x40000
    s_mov_b32 s11, 0x20000
    s_mov_b32 s14, 0x40000
    s_mov_b32 s15, 0x20000
    s_mov_b32 s19, 0x20000
    s_mov_b32 s22, 229376
    s_mov_b32 s23, 0x20000
    s_mov_b32 s26, 8192
    s_mov_b32 s27, 0x20000
    s_mov_b32 s63, {f2h(CS)}
    s_mov_b32 s64, 4096
    s_mov_b32 s7, 0
    s_mov_b32 s37, 0
    s_mov_b32 s38, 0
    s_mov_b32 s40, 0
    s_mov_b32 s41, 0
    s_mov_b32 s62, 2
    s_mov_b32 s65, 0
    s_waitcnt lgkmcnt(0)
    ''')
    e.L(f'''
    v_and_b32 v{T + 4}, 31, v0
    v_lshrrev_b32 v{T + 5}, 5, v0
    v_and_b32 v{T + 6}, 15, v0
    v_lshlrev_b32 v{T + 7}, 8, v{T + 4}
    ''')
    for ks in range(8):
        e.L(f'''
        v_add_u32 v{T + 8}, {2 * ks}, v{T + 5}
        v_xor_b32 v{T + 8}, v{T + 8}, v{T + 6}
        v_lshl_add_u32 v{vKA + ks}, v{T + 8}, 4, v{T + 7}
        ''')
    e.L(f'''
    v_bfe_u32 v{T + 8}, v0, 2, 2
    v_lshl_add_u32 v{T + 9}, v{T + 5}, 2, v{T + 8}
    v_lshlrev_b32 v{T + 9}, 8, v{T + 9}
    v_bfe_u32 v{T + 10}, v0, 4, 1
    v_lshl_add_u32 v{T + 9}, v{T + 10}, 5, v{T + 9}
    v_and_b32 v{T + 10}, 1, v0
    v_lshl_add_u32 v{T + 9}, v{T + 10}, 4, v{T + 9}
    v_bfe_u32 v{T + 10}, v0, 1, 1
    v_lshl_add_u32 v{T + 9}, v{T + 10}, 3, v{T + 9}
    ''')
    for t in range(4):
        e.L(f'''
        v_xor_b32 v{T + 10}, {t}, v{T + 8}
        v_lshl_add_u32 v{vVA + t}, v{T + 10}, 6, v{T + 9}
        ''')
    e.L(f'''
    s_lshl_b32 s66, s3, 12
    s_add_u32 s66, s66, {XST}
    v_and_b32 v16, 31, v0
    v_lshrrev_b32 v17, 5, v0
    v_bfe_u32 v18, v0, 1, 3
    v_lshlrev_b32 v19, 7, v16
    v_add_u32 v19, s66, v19
    v_add_u32 v20, 0, v17
    v_xor_b32 v20, v20, v18
    v_lshl_add_u32 v{T + 5}, v20, 4, v19
    v_add_u32 v20, 2, v17
    v_xor_b32 v20, v20, v18
    v_lshl_add_u32 v{T + 6}, v20, 4, v19
    v_add_u32 v20, 4, v17
    v_xor_b32 v20, v20, v18
    v_lshl_add_u32 v{T + 7}, v20, 4, v19
    v_add_u32 v20, 6, v17
    v_xor_b32 v20, v20, v18
    v_lshl_add_u32 v{T + 8}, v20, 4, v19
    v_lshrrev_b32 v16, 3, v0
    s_lshl_b32 s28, s3, 5
    v_add_u32 v17, s28, v16
    v_lshlrev_b32 v17, 10, v17
    v_lshrrev_b32 v18, 1, v16
    v_and_b32 v19, 7, v0
    v_xor_b32 v20, v19, v18
    v_lshl_add_u32 v{T}, v20, 4, v17
    v_xor_b32 v20, 4, v20
    v_lshl_add_u32 v{T + 4}, v20, 4, v17
    v_lshlrev_b32 v{T + 1}, 4, v0
    ''')
    loader_regs(e)
    e.L('s_cmp_eq_u32 s3, 7\ns_cbranch_scc0 ITEM')
    loader(e)
    e.raw('ITEM:')
    xsrd(e, 's7')
    xchunk_dma(e, 0)
    e.I('s_waitcnt vmcnt(0)')
    e.raw('ITEM2:')
    item_setup(e, 's7')
    stamp(e, 0)
    e.raw('ITEM_X:')
    e.fence()
    qproj(e)
    stamp(e, 2)
    e.L('''
    s_cmp_eq_u32 s65, 1
    s_cbranch_scc1 MODE1
    s_cmp_eq_u32 s65, 2
    s_cbranch_scc1 MODE2
    ''')
    e.fence()
    kv_fast(e)
    e.fence()
    stamp(e, 4)
    epilogue(e, not ('noload' in EXP or 'nocomp' in EXP))
    stamp(e, 5)
    e.I('s_branch ITEM_END')
    e.raw('MODE1:'); e.fence()
    e.I(f'v_mov_b32 v{vM}, 0xff800000')
    kv_slow(e, 1)
    e.fence()
    swap_combine(e, vM, 'v_max_f32')
    e.I('s_branch ITEM_END')
    e.raw('MODE2:'); e.fence()
    kv_slow(e, 2)
    e.fence()
    epilogue(e, False)
    e.raw('ITEM_END:'); e.fence()
    e.L('''
    s_sub_u32 s62, s62, 1
    s_cmp_eq_u32 s62, 0
    s_cbranch_scc1 ITEMS_DONE
    s_xor_b32 s7, s7, 1
    s_branch ITEM2
    ITEMS_DONE:
    ''')
    e.L(f'''
    DECIDE:
    s_cmp_lg_u32 s65, 0
    s_cbranch_scc1 NEXT_REDO
    s_barrier
    v_mov_b32 v112, s40
    s_lshl_b32 s28, s3, 2
    v_mov_b32 v113, s28
    ds_write_b32 v113, v112
    s_waitcnt lgkmcnt(0)
    s_barrier
    v_and_b32 v113, 7, v0
    v_lshlrev_b32 v113, 2, v113
    ds_read_b32 v112, v113
    s_waitcnt lgkmcnt(0)
    v_and_b32 v113, 1, v112
    v_cmp_ne_u32 vcc, 0, v113
    v_and_b32 v113, 2, v112
    s_nop 4
    s_cmp_lg_u64 vcc, 0
    s_cselect_b32 s41, 1, 0
    v_cmp_ne_u32 vcc, 0, v113
    s_nop 4
    s_cmp_lg_u64 vcc, 0
    s_cselect_b32 s28, 2, 0
    s_or_b32 s41, s41, s28
    s_barrier
    s_mov_b32 s65, 2
    NEXT_REDO:
    s_cmp_eq_u32 s65, 1
    s_cbranch_scc1 REDO_PASS2
    s_cmp_eq_u32 s41, 0
    s_cbranch_scc1 K1_DONE
    s_and_b32 s28, s41, 1
    s_cselect_b32 s7, 0, 1
    s_cselect_b32 s28, 1, 2
    s_xor_b32 s41, s41, s28
    s_mov_b32 s65, 1
    s_branch REDO_GO
    REDO_PASS2:
    s_mov_b32 s65, 2
    REDO_GO:
    s_mov_b32 s62, 1
    s_barrier
    s_cmp_eq_u32 s3, 7
    s_cbranch_scc1 LD_STREAM
    s_branch ITEM
    K1_DONE:
    ''')
    if 'stamp' in EXP:
        e.L('''
        s_cmp_lg_u32 s2, STAMPWG
        s_cbranch_scc1 NOSTAMP
        s_cmp_lg_u32 s3, STAMPWV
        s_cbranch_scc1 NOSTAMP
        s_load_dwordx2 s[28:29], s[0:1], 88
        s_mov_b32 s30, 256
        s_mov_b32 s31, 0x20000
        v_lshlrev_b32 v248, 2, v0
        s_waitcnt lgkmcnt(0)
        buffer_store_dword v1, v248, s[28:31], 0 offen
        NOSTAMP:
        '''.replace('STAMPWG', os.environ.get('SWG', '0')).replace('STAMPWV', os.environ.get('SWV', '0')))
    e.L('''
    s_waitcnt vmcnt(0)
    K1_EXIT:
    s_endpgm
    ''')
```

```python
from em import Em
from k1 import vr, EXP
R = 5; LR = 6
BF = 16; AF = BF + 32 * R; T = AF + 32
def ar(b, n): return 'a[%d:%d]' % (b, b + n - 1)
def acc(t, i): return ar(16 * (2 * i + t), 16)
vm = []
def wait_for(e, tags):
    idx = max(i for i, t in enumerate(vm) if t in tags)
    n = len(vm) - 1 - idx
    assert n <= 63
    e.I(f's_waitcnt vmcnt({n})')
def loadB(e, d, part):
    if d > 31: return
    e.I(f's_mov_b32 s30, {d * 2048 + part * 1024}')
    for i in range(4):
        e.I(f'buffer_load_dwordx4 {vr(BF + 32 * (d % R) + 16 * part + 4 * i, 4)}, v{4 + i}, s[8:11], s30 offen')
        vm.append(('B', d))
def loadA(e, d):
    if d > 31: return
    for j in range(4):
        e.I(f's_add_u32 m0, s33, {(d % LR) * 4096 + j * 1024}')
        e.I(f's_mov_b32 s32, {d * 32768 + j * 8192}')
        e.I('buffer_load_dwordx4 v8, s[12:15], s32 offen lds')
        vm.append(('A', d))
def areads(d):
    r = []
    for u in range(2):
        for t in range(2):
            for ee in range(2):
                r.append(f'ds_read_b64_tr_b16 {vr(AF + 16 * (d & 1) + 8 * u + 4 * t + 2 * ee, 2)}, v{2 + t} offset:{(d % LR) * 4096 + u * 2048 + ee * 512}')
    return r
def step(e, d):
    tags = {('B', d)} | ({('A', d + 1)} if d < 31 else set())
    wait_for(e, tags)
    rd = areads(d + 1) if d < 31 else []
    k = 0
    for u in range(2):
        for i in range(4):
            for t in range(2):
                c = '0' if (d == 0 and u == 0) else acc(t, i)
                e.I(f'v_mfma_f32_32x32x16_bf16 {acc(t, i)}, {vr(AF + 16 * (d & 1) + 8 * u + 4 * t, 4)}, {vr(BF + 32 * (d % R) + 16 * u + 4 * i, 4)}, {c}')
                if k < len(rd): e.I(rd[k]); k += 1
        loadB(e, d + R, u)
    loadA(e, d + R + 1)
def kernel(e):
    e.L(f'''
    s_cmp_ge_u32 s2, 224
    s_cbranch_scc1 K2_EXIT
    s_load_dwordx2 s[44:45], s[0:1], 32
    s_load_dwordx2 s[46:47], s[0:1], 72
    s_load_dwordx2 s[48:49], s[0:1], 80
    s_load_dwordx2 s[60:61], s[0:1], 96
    v_lshrrev_b32 v1, 6, v0
    v_and_b32 v0, 63, v0
    s_and_b32 s28, s2, 7
    v_readfirstlane_b32 s3, v1
    s_lshr_b32 s29, s2, 3
    s_mul_i32 s28, s28, 28
    s_add_u32 s28, s28, s29
    s_lshr_b32 s5, s28, 3
    s_and_b32 s4, s28, 7
    s_cmp_ge_u32 s5, 14
    s_cselect_b32 s7, 1, 0
    s_waitcnt lgkmcnt(0)
    s_cselect_b32 s12, s46, s44
    s_cselect_b32 s13, s47, s45
    s_lshl_b32 s28, s3, 20
    s_lshl_b32 s29, s4, 7
    s_add_u32 s28, s28, s29
    s_add_u32 s12, s12, s28
    s_addc_u32 s13, s13, 0
    s_sub_u32 s14, 0x400000, s28
    s_mov_b32 s15, 0x20000
    s_lshl_b32 s28, s5, 20
    s_lshl_b32 s29, s3, 16
    s_add_u32 s28, s28, s29
    s_add_u32 s8, s60, s28
    s_addc_u32 s9, s61, 0
    s_mov_b32 s10, {3 * 262144 + 65536}
    s_mov_b32 s11, 0x20000
    s_mul_i32 s28, s7, 14
    s_sub_u32 s28, s5, s28
    s_lshl_b32 s28, s28, 2
    s_add_u32 s28, s28, s3
    s_lshl_b32 s28, s28, 16
    s_lshl_b32 s29, s7, 10
    s_add_u32 s28, s28, s29
    s_lshl_b32 s29, s4, 7
    s_add_u32 s28, s28, s29
    s_add_u32 s16, s48, s28
    s_addc_u32 s17, s49, 0
    s_mov_b32 s18, {31 * 2048 + 128}
    s_mov_b32 s19, 0x20000
    s_mul_i32 s33, s3, 24576
    s_mov_b32 s30, 0
    s_mov_b32 s31, 0
    v_lshlrev_b32 v4, 4, v0
    v_add_u32 v5, 0x40000, v4
    v_add_u32 v6, 0x80000, v4
    v_add_u32 v7, 0xc0000, v4
    v_lshrrev_b32 v{T}, 3, v0
    v_bfe_u32 v{T + 1}, v0, 4, 1
    v_lshlrev_b32 v{T + 1}, 2, v{T + 1}
    v_and_b32 v{T + 2}, 7, v0
    v_xor_b32 v{T + 1}, v{T + 1}, v{T + 2}
    v_lshlrev_b32 v{T + 1}, 4, v{T + 1}
    v_lshl_add_u32 v8, v{T}, 10, v{T + 1}
    v_bfe_u32 v{T}, v0, 2, 2
    v_lshrrev_b32 v{T + 1}, 5, v0
    v_lshlrev_b32 v{T + 2}, 7, v{T}
    v_lshl_add_u32 v{T + 2}, v{T + 1}, 10, v{T + 2}
    v_bfe_u32 v{T + 3}, v0, 4, 1
    v_lshl_add_u32 v{T + 2}, v{T + 3}, 5, v{T + 2}
    v_and_b32 v{T + 3}, 1, v0
    v_lshl_add_u32 v{T + 2}, v{T + 3}, 4, v{T + 2}
    v_bfe_u32 v{T + 3}, v0, 1, 1
    v_lshl_add_u32 v{T + 2}, v{T + 3}, 3, v{T + 2}
    v_add_u32 v{T + 2}, s33, v{T + 2}
    v_lshrrev_b32 v{T}, 1, v{T}
    v_lshl_add_u32 v2, v{T}, 6, v{T + 2}
    v_xor_b32 v{T}, 1, v{T}
    v_lshl_add_u32 v3, v{T}, 6, v{T + 2}
    v_and_b32 v{T}, 31, v0
    v_lshlrev_b32 v{T}, 11, v{T}
    v_lshl_add_u32 v9, v{T + 1}, 4, v{T}
    ''')
    loadA(e, 0)
    for j in range(R):
        loadB(e, j, 0); loadB(e, j, 1); loadA(e, j + 1)
    wait_for(e, {('A', 0)})
    for x in areads(0): e.I(x)
    for d in range(32): step(e, d)
    e.fence()
    e.L(f'''
    s_barrier
    v_lshlrev_b32 v10, 4, v0
    s_lshl_b32 s28, s3, 15
    v_add_u32 v11, s28, v10
    ''')
    for i in range(4):
        for t in range(2):
            for j in range(4):
                e.I(f'ds_write_b128 v11, {ar(16 * (2 * i + t) + 4 * j, 4)} offset:{i * 8192 + t * 4096 + j * 1024}')
    e.waitlgk0()
    e.L(f'''
    s_barrier
    s_lshl_b32 s28, s3, 13
    v_add_u32 v11, s28, v10
    v_add_u32 v12, 0x10000, v11
    ''')
    for w in range(4):
        for x in range(8):
            e.I(f'ds_read_b128 {vr(16 + 32 * w + 4 * x, 4)}, v{11 + (w >> 1)} offset:{(w & 1) * 32768 + x * 1024}')
    for r in range(32):
        e.I(f'v_add_f32 v{16 + r}, v{16 + r}, v{48 + r}')
        e.I(f'v_add_f32 v{80 + r}, v{80 + r}, v{112 + r}')
        e.I(f'v_add_f32 v{16 + r}, v{16 + r}, v{80 + r}')
    for t in range(2):
        for a in range(2):
            b = 16 + 16 * t + 8 * a; dst = 144 + 4 * (2 * t + a)
            for i in range(4): e.I(f'v_cvt_pk_bf16_f32 v{dst + i}, v{b + 2 * i}, v{b + 2 * i + 1}')
            e.I(f'buffer_store_dwordx4 {vr(dst, 4)}, v9, s[16:19], 0 offen offset:{t * 64 + a * 32}')
    e.L('''
    s_waitcnt vmcnt(0)
    K2_EXIT:
    s_endpgm
    ''')
```

```python
from em import Em
import os
EXP = os.environ.get('EXP', '').split(',')
SLOT = 32768; NSLOT = 4; RING = SLOT * NSLOT; XST = RING
vKA = 2; vVA = 10; vL = 14; vX = 15; vM = 1
O = 16; Q = 80; S = 112; KF = 144; VF = 176; XR = 112; WF = 144; OB = 144; T = 240
CS = 0.08838834764831845 * 1.4426950408889634
import struct
def f2h(x): return '0x%08x' % struct.unpack('<I', struct.pack('<f', x))[0]
def vr(b, n): return 'v[%d:%d]' % (b, b + n - 1)

def item_setup(e, br):
    e.L(f'''
    s_cmp_eq_u32 {br}, 0
    s_cselect_b32 s8, s46, s54
    s_cselect_b32 s9, s47, s55
    s_cselect_b32 s12, s48, s56
    s_cselect_b32 s13, s49, s57
    s_cselect_b32 s16, s50, s58
    s_cselect_b32 s17, s51, s59
    s_lshl_b32 s28, s5, 5
    s_add_u32 s28, s28, s4
    s_lshl_b32 s28, s28, 18
    s_add_u32 s8, s8, s28
    s_addc_u32 s9, s9, 0
    s_add_u32 s12, s12, s28
    s_addc_u32 s13, s13, 0
    s_lshl_b32 s28, s4, 8
    s_add_u32 s16, s16, s28
    s_addc_u32 s17, s17, 0
    s_sub_u32 s18, 0x400000, s28
    s_mul_i32 s28, {br}, 56
    s_mul_i32 s29, s5, 7
    s_add_u32 s28, s28, s29
    s_add_u32 s28, s28, s3
    s_lshl_b32 s28, s28, 18
    s_lshl_b32 s29, s4, 13
    s_add_u32 s28, s28, s29
    s_add_u32 s24, s60, s28
    s_addc_u32 s25, s61, 0
    ''')

def slot_adv(e, sreg):
    e.L(f'''
    s_add_u32 {sreg}, {sreg}, {SLOT}
    s_cmp_eq_u32 {sreg}, {RING}
    s_cselect_b32 {sreg}, 0, {sreg}
    ''')

NT = '' if 'nont' in EXP else ' nt'
def issue_w(e):
    for j in range(32):
        jp = (j & ~3) | ((j & 1) << 1) | ((j >> 1) & 1)
        e.I(f's_add_u32 m0, s37, {j * 1024}')
        e.I(f's_add_u32 s31, s30, {jp * 4 * 8192}')
        if 'noload' not in EXP: e.I('buffer_load_dwordx4 v255, s[16:19], s31 offen lds')
    e.I(f's_add_u32 s30, s30, {128 * 8192}')
    slot_adv(e, 's37')
def issue_kv(e):
    for g in range(4):
        for part, srd in ((0, 's[8:11]'), (1, 's[12:15]')):
            e.I(f's_add_u32 m0, s37, {part * 16384 + g * 4096}')
            e.I(f's_add_u32 s31, s30, {g * 4096}')
            for a in range(4):
                v = 250 + a if part == 0 else 254
                if 'noload' not in EXP: e.I(f'buffer_load_dwordx4 v{v}, {srd}, s31 offen offset:{a * 1024}' + NT + ' lds')
    e.I('s_add_u32 s30, s30, 16384')
    slot_adv(e, 's37')
def loader_regs(e):
    e.L('v_lshrrev_b32 v16, 4, v0\nv_and_b32 v17, 15, v0')
    for a in range(4):
        e.L(f'''
        v_add_u32 v18, {4 * a}, v16
        v_xor_b32 v18, v18, v17
        v_lshlrev_b32 v18, 4, v18
        v_lshl_add_u32 v{250 + a}, v16, 8, v18
        ''')
    e.L('''
    v_lshlrev_b32 v18, 2, v16
    v_xor_b32 v18, v18, v17
    v_lshlrev_b32 v18, 4, v18
    v_lshl_add_u32 v254, v16, 8, v18
    v_lshl_add_u32 v255, v16, 13, v18
    ''')
def loader(e):
    e.L('''
    s_setprio 3
    LD_STREAM:
    ''')
    item_setup(e, 's7')
    e.L('''
    s_mov_b32 s30, 0
    s_mov_b32 s36, 3
    LD_PRO:
    ''')
    issue_w(e)
    e.L('''
    s_sub_u32 s36, s36, 1
    s_cmp_lg_u32 s36, 0
    s_cbranch_scc1 LD_PRO
    s_mov_b32 s36, 1
    LD_WSTEP:
    s_waitcnt vmcnt(63)
    s_barrier
    ''')
    issue_w(e)
    e.L('''
    s_sub_u32 s36, s36, 1
    s_cmp_lg_u32 s36, 0
    s_cbranch_scc1 LD_WSTEP
    s_mov_b32 s30, 0
    s_mov_b32 s36, 16
    LD_KV:
    s_waitcnt vmcnt(63)
    s_barrier
    ''')
    issue_kv(e)
    e.L('''
    s_sub_u32 s36, s36, 1
    s_cmp_lg_u32 s36, 0
    s_cbranch_scc1 LD_KV
    s_sub_u32 s62, s62, 1
    s_cmp_eq_u32 s62, 0
    s_cbranch_scc1 LD_TAIL
    s_xor_b32 s7, s7, 1
    ''')
    item_setup(e, 's7')
    e.L('''
    s_mov_b32 s30, 0
    s_mov_b32 s36, 4
    s_branch LD_WSTEP
    LD_TAIL:
    s_waitcnt vmcnt(63)
    s_barrier
    ''')
    if 'nopf' in EXP:
        e.L('''
        s_waitcnt vmcnt(32)
        s_barrier
        s_waitcnt vmcnt(0)
        s_barrier
        s_branch DECIDE
        ''')
        return
    e.L('''
    s_load_dwordx2 s[76:77], s[0:1], 32
    s_load_dwordx2 s[78:79], s[0:1], 72
    s_and_b32 s28, s2, 127
    s_lshl_b32 s28, s28, 15
    s_cmp_ge_u32 s2, 128
    s_waitcnt lgkmcnt(0)
    s_cselect_b32 s72, s78, s76
    s_cselect_b32 s73, s79, s77
    s_add_u32 s72, s72, s28
    s_addc_u32 s73, s73, 0
    s_mov_b32 s74, 32768
    s_mov_b32 s75, 0x20000
    v_lshlrev_b32 v16, 4, v0
    ''')
    for j in range(32):
        e.I(f's_mov_b32 s31, {j * 1024}')
        e.I(f'buffer_load_dwordx4 {vr(20 + 4 * (j & 7), 4)}, v16, s[72:75], s31 offen')
    e.L('''
    s_waitcnt vmcnt(63)
    s_barrier
    s_waitcnt vmcnt(32)
    s_barrier
    s_waitcnt vmcnt(0)
    s_branch DECIDE
    ''')

def kread(T_, ks): return f'ds_read_b128 {vr(KF + 4 * ks, 4)}, v{vKA + ks} offset:{T_ * 8192}'
def vread(T_, t, u, ee): return f'ds_read_b64_tr_b16 {vr(VF + 32 * T_ + 8 * t + 4 * u + 2 * ee, 2)}, v{vVA + t} offset:{16384 + T_ * 8192 + u * 4096 + ee * 2048}'
def qk(T_, ks):
    d = vr(S + 16 * T_, 16)
    return f'v_mfma_f32_32x32x16_bf16 {d}, {vr(KF + 4 * ks, 4)}, {vr(Q + 4 * ks, 4)}, {"0" if ks == 0 else d}'
def pv(T_, t, u):
    d = vr(O + 16 * t, 16)
    return f'v_mfma_f32_32x32x16_bf16 {d}, {vr(VF + 32 * T_ + 8 * t + 4 * u, 4)}, {vr(S + 16 * T_ + 4 * u, 4)}, {d}'
def sm(T_, sub=False):
    r = []; b = S + 16 * T_
    for i in range(0, 16, 2):
        if sub: r += [f'v_sub_f32 v{b + i}, v{b + i}, v{vM}', f'v_sub_f32 v{b + i + 1}, v{b + i + 1}, v{vM}']
        r += [f'v_exp_f32 v{b + i}, v{b + i}', f'v_exp_f32 v{b + i + 1}, v{b + i + 1}']
        if i >= 2:
            r += post(T_, i - 2)
    r += post(T_, 14)
    return r
def post(T_, i):
    b = S + 16 * T_
    return [f'v_add_f32 v{vL}, v{vL}, v{b + i}', f'v_add_f32 v{vX}, v{vX}, v{b + i + 1}',
            f'v_cvt_pk_bf16_f32 v{S + 16 * T_ + i // 2}, v{b + i}, v{b + i + 1}']
def weave(e, mf, fill, skip=0):
    n = len(mf); k = 0
    for i, (m, rd) in enumerate(mf):
        e.I(m)
        for x in rd: e.I(x)
        tgt = (len(fill) * max(0, i + 1 - skip)) // (n - skip)
        while k < tgt: e.I(fill[k]); k += 1
def adv_regs(e, base, n, sd):
    for i in range(n): e.I(f'v_add_u32 v{base + i}, {sd}, v{base + i}')
def delta(e, sreg, sd):
    e.L(f'''
    s_add_u32 {sd}, {sreg}, {SLOT}
    s_cmp_eq_u32 {sd}, {RING}
    s_cselect_b32 {sd}, 0, {sd}
    s_sub_u32 s29, {sd}, {sreg}
    s_mov_b32 {sreg}, {sd}
    s_mov_b32 {sd}, s29
    ''')
PVO = [(t, u) for u in range(2) for t in range(4)]
def phase_pv(e, T_, reload_T, fill, extra=None, skip=0):
    mf = []
    for i, (t, u) in enumerate(PVO):
        rd = [vread(reload_T, t, u, 0), vread(reload_T, t, u, 1)] if reload_T is not None else []
        if extra: rd = rd + [extra[i]]
        mf.append((pv(T_, t, u), rd))
    weave(e, mf, fill, skip)
def phase_qk(e, T_, reload_T, fill):
    weave(e, [(qk(T_, ks), [kread(reload_T, ks)] if reload_T is not None else []) for ks in range(8)], fill)

def phase(e, mfs, reads, fill, skip=0, rf=None):
    n = len(mfs); rf = rf or n
    per = [reads[(len(reads) * i) // rf:(len(reads) * (i + 1)) // rf] if i < rf else [] for i in range(n)]
    weave(e, list(zip(mfs, per)), fill, skip)
def vreads(T_): return [vread(T_, t, u, ee) for t, u in PVO for ee in range(2)]
def kreads(T_): return [kread(T_, ks) for ks in range(8)]
def qks(T_): return [qk(T_, ks) for ks in range(8)]
def pvs(T_): return [pv(T_, t, u) for t, u in PVO]
def adv_slot(e):
    delta(e, 's37', 's39'); adv_regs(e, vKA, 12, 's39')
def kv_iter(e, first=False):
    s1 = sm(1); s0 = sm(0); h = len(s1) // 2
    e.I('s_barrier')
    if 'nocomp' in EXP: return
    if first:
        for x in kreads(0): e.I(x)
        phase(e, qks(0), kreads(1), [])
        for x in vreads(0): e.I(x)
        phase(e, qks(1), vreads(1), s0, skip=1, rf=5)
    else:
        phase(e, pvs(0), kreads(0), s1[:h])
        phase(e, qks(0), kreads(1), s1[h:])
        phase(e, pvs(1), vreads(0), s0[:h], skip=2)
        phase(e, qks(1), vreads(1), s0[h:], rf=5)
    adv_slot(e)
    e.waitlgk0()
def kv_fast(e):
    kv_iter(e, first=True)
    stamp(e, 3)
    e.I('s_mov_b32 s36, 15')
    def body():
        e.raw('KV_LOOP:')
        kv_iter(e)
        e.L('s_sub_u32 s36, s36, 1\ns_cmp_lg_u32 s36, 0\ns_cbranch_scc1 KV_LOOP')
    e.loop(body)
    phase(e, pvs(0), [], sm(1))
    e.I('s_xor_b32 s34, s7, 1'); xsrd(e, 's34')
    xchunk_dma(e, 0)
    phase(e, pvs(1), [], [])
def kv_slow(e, mode):
    lab = f'KV_SLOW{mode}'
    e.I('s_mov_b32 s36, 16')
    def body():
        e.raw(lab + ':')
        e.I('s_barrier')
        for T_ in range(2):
            for ks in range(8): e.I(kread(T_, ks))
            for ks in range(8): e.I(qk(T_, ks))
            if mode == 1:
                for i in range(0, 16, 2): e.I(f'v_max3_f32 v{vM}, v{vM}, v{S + 16 * T_ + i}, v{S + 16 * T_ + i + 1}')
            else:
                for x in sm(T_, sub=True): e.I(x)
                for t, u in PVO:
                    e.I(vread(T_, t, u, 0)); e.I(vread(T_, t, u, 1))
                for t, u in PVO: e.I(pv(T_, t, u))
        e.waitlgk0()
        adv_slot(e)
        e.L(f's_sub_u32 s36, s36, 1\ns_cmp_lg_u32 s36, 0\ns_cbranch_scc1 {lab}')
    e.loop(body)
def wread(buf, t, u, ee): return f'ds_read_b64_tr_b16 {vr(WF + 16 * buf + 4 * t + 2 * ee, 2)}, v{vVA + t} offset:{u * 4096 + ee * 2048}'
def xchunk_dma(e, c):
    for j in range(4):
        e.I(f's_add_u32 m0, s66, {j * 1024}')
        e.I(f's_mov_b32 s31, {j * 8192 + c * 128}')
        e.I(f'buffer_load_dwordx4 v{T + 4 * (j & 1)}, s[20:23], s31 offen lds')
def xchunk_read(e, buf):
    for ks in range(4): e.I(f'ds_read_b128 {vr(XR + 16 * buf + 4 * ks, 4)}, v{T + 5 + ks}')
def qproj(e):
    for i in range(4):
        e.I('s_barrier')
        if 'nocomp' in EXP: continue
        for t in range(4):
            e.I(wread(0, t, 0, 0)); e.I(wread(0, t, 0, 1))
        if i == 0:
            e.I('s_waitcnt vmcnt(8)')
            stamp(e, 1)
            xchunk_read(e, 0); e.waitlgk0(); xchunk_dma(e, 1)
        for u in range(8):
            c = 2 * i + (u >> 2)
            for t in range(4):
                d = vr(O + 16 * t, 16)
                cc = '0' if (i == 0 and u == 0) else d
                e.I(f'v_mfma_f32_32x32x16_bf16 {d}, {vr(WF + 16 * (u & 1) + 4 * t, 4)}, {vr(XR + 16 * (c & 1) + 4 * (u & 3), 4)}, {cc}')
                if u < 7:
                    e.I(wread((u + 1) & 1, t, u + 1, 0)); e.I(wread((u + 1) & 1, t, u + 1, 1))
                if (u & 3) == 2 and t == 3 and c < 7:
                    e.I('s_waitcnt vmcnt(0)'); xchunk_read(e, (c + 1) & 1)
                if (u & 3) == 3 and t == 1 and c < 6:
                    e.waitlgk0(); xchunk_dma(e, c + 2)
        adv_slot(e)
    for i in range(0, 64, 2):
        e.I(f'v_mul_f32 v{O + i}, s63, v{O + i}'); e.I(f'v_mul_f32 v{O + i + 1}, s63, v{O + i + 1}')
        e.I(f'v_cvt_pk_bf16_f32 v{Q + i // 2}, v{O + i}, v{O + i + 1}')
    for i in range(64): e.I(f'v_mov_b32 v{O + i}, 0')
    e.I(f'v_mov_b32 v{vL}, 0'); e.I(f'v_mov_b32 v{vX}, 0')
def xsrd(e, br):
    e.L(f'''
    s_cmp_eq_u32 {br}, 0
    s_cselect_b32 s20, s44, s52
    s_cselect_b32 s21, s45, s53
    s_mul_i32 s28, s5, 229376
    s_add_u32 s20, s20, s28
    s_addc_u32 s21, s21, 0
    ''')
def stamp(e, idx):
    if 'stamp' not in EXP: return
    e.L(f'''
    s_memtime s[70:71]
    s_lshl_b32 s31, s7, 3
    s_add_u32 m0, s31, {idx}
    s_waitcnt lgkmcnt(0)
    s_nop 4
    v_writelane_b32 v1, s70, m0
    ''')
def swap_combine(e, v, op):
    e.L(f'''
    v_mov_b32 v{T + 2}, v{v}
    v_permlane32_swap_b32 v{v}, v{T + 2}
    {op} v{v}, v{v}, v{T + 2}
    ''')
def epilogue(e, check):
    e.I(f'v_add_f32 v{vL}, v{vL}, v{vX}')
    swap_combine(e, vL, 'v_add_f32')
    if check:
        e.L(f'''
        v_cmp_le_f32 vcc, {f2h(2.0 ** -30)}, v{vL}
        s_nop 4
        s_mov_b64 s[34:35], vcc
        v_cmp_ge_f32 vcc, {f2h(2.0 ** 30)}, v{vL}
        s_nop 4
        s_and_b64 vcc, vcc, s[34:35]
        s_cmp_eq_u64 vcc, -1
        s_cselect_b32 s33, 0, 1
        s_lshl_b32 s33, s33, s7
        s_or_b32 s40, s40, s33
        ''')
    e.I(f'v_rcp_f32 v{T + 3}, v{vL}')
    for t in range(4):
        for a in range(2):
            b = O + 16 * t + 8 * a; dst = OB + 4 * (2 * t + a)
            for i in range(8): e.I(f'v_mul_f32 v{b + i}, v{T + 3}, v{b + i}')
            for i in range(4): e.I(f'v_cvt_pk_bf16_f32 v{dst + i}, v{b + 2 * i}, v{b + 2 * i + 1}')
            ks = 2 * t + a
            e.I(f'buffer_store_dwordx4 {vr(dst, 4)}, v{T + 1}, s[24:27], {"s64" if ks >= 4 else "0"} offen offset:{(ks & 3) * 1024}')

def kernel(e, name):
    e.L(f'''
    s_cmp_ge_u32 s2, 256
    s_cbranch_scc1 K1_EXIT
    s_load_dwordx8 s[44:51], s[0:1], 0
    s_load_dwordx8 s[52:59], s[0:1], 40
    s_load_dwordx2 s[60:61], s[0:1], 96
    v_lshrrev_b32 v1, 6, v0
    v_and_b32 v0, 63, v0
    s_and_b32 s28, s2, 7
    v_readfirstlane_b32 s3, v1
    s_lshr_b32 s29, s2, 3
    s_and_b32 s4, s29, 3
    s_lshl_b32 s28, s28, 2
    s_add_u32 s4, s4, s28
    s_lshr_b32 s5, s29, 2
    s_mov_b32 s10, 0x40000
    s_mov_b32 s11, 0x20000
    s_mov_b32 s14, 0x40000
    s_mov_b32 s15, 0x20000
    s_mov_b32 s19, 0x20000
    s_mov_b32 s22, 229376
    s_mov_b32 s23, 0x20000
    s_mov_b32 s26, 8192
    s_mov_b32 s27, 0x20000
    s_mov_b32 s63, {f2h(CS)}
    s_mov_b32 s64, 4096
    s_mov_b32 s7, 0
    s_mov_b32 s37, 0
    s_mov_b32 s38, 0
    s_mov_b32 s40, 0
    s_mov_b32 s41, 0
    s_mov_b32 s62, 2
    s_mov_b32 s65, 0
    s_waitcnt lgkmcnt(0)
    ''')
    e.L(f'''
    v_and_b32 v{T + 4}, 31, v0
    v_lshrrev_b32 v{T + 5}, 5, v0
    v_and_b32 v{T + 6}, 15, v0
    v_lshlrev_b32 v{T + 7}, 8, v{T + 4}
    ''')
    for ks in range(8):
        e.L(f'''
        v_add_u32 v{T + 8}, {2 * ks}, v{T + 5}
        v_xor_b32 v{T + 8}, v{T + 8}, v{T + 6}
        v_lshl_add_u32 v{vKA + ks}, v{T + 8}, 4, v{T + 7}
        ''')
    e.L(f'''
    v_bfe_u32 v{T + 8}, v0, 2, 2
    v_lshl_add_u32 v{T + 9}, v{T + 5}, 2, v{T + 8}
    v_lshlrev_b32 v{T + 9}, 8, v{T + 9}
    v_bfe_u32 v{T + 10}, v0, 4, 1
    v_lshl_add_u32 v{T + 9}, v{T + 10}, 5, v{T + 9}
    v_and_b32 v{T + 10}, 1, v0
    v_lshl_add_u32 v{T + 9}, v{T + 10}, 4, v{T + 9}
    v_bfe_u32 v{T + 10}, v0, 1, 1
    v_lshl_add_u32 v{T + 9}, v{T + 10}, 3, v{T + 9}
    ''')
    for t in range(4):
        e.L(f'''
        v_xor_b32 v{T + 10}, {t}, v{T + 8}
        v_lshl_add_u32 v{vVA + t}, v{T + 10}, 6, v{T + 9}
        ''')
    e.L(f'''
    s_lshl_b32 s66, s3, 12
    s_add_u32 s66, s66, {XST}
    v_and_b32 v16, 31, v0
    v_lshrrev_b32 v17, 5, v0
    v_bfe_u32 v18, v0, 1, 3
    v_lshlrev_b32 v19, 7, v16
    v_add_u32 v19, s66, v19
    v_add_u32 v20, 0, v17
    v_xor_b32 v20, v20, v18
    v_lshl_add_u32 v{T + 5}, v20, 4, v19
    v_add_u32 v20, 2, v17
    v_xor_b32 v20, v20, v18
    v_lshl_add_u32 v{T + 6}, v20, 4, v19
    v_add_u32 v20, 4, v17
    v_xor_b32 v20, v20, v18
    v_lshl_add_u32 v{T + 7}, v20, 4, v19
    v_add_u32 v20, 6, v17
    v_xor_b32 v20, v20, v18
    v_lshl_add_u32 v{T + 8}, v20, 4, v19
    v_lshrrev_b32 v16, 3, v0
    s_lshl_b32 s28, s3, 5
    v_add_u32 v17, s28, v16
    v_lshlrev_b32 v17, 10, v17
    v_lshrrev_b32 v18, 1, v16
    v_and_b32 v19, 7, v0
    v_xor_b32 v20, v19, v18
    v_lshl_add_u32 v{T}, v20, 4, v17
    v_xor_b32 v20, 4, v20
    v_lshl_add_u32 v{T + 4}, v20, 4, v17
    v_lshlrev_b32 v{T + 1}, 4, v0
    ''')
    loader_regs(e)
    e.L('s_cmp_eq_u32 s3, 7\ns_cbranch_scc0 ITEM')
    loader(e)
    e.raw('ITEM:')
    xsrd(e, 's7')
    xchunk_dma(e, 0)
    e.I('s_waitcnt vmcnt(0)')
    e.raw('ITEM2:')
    item_setup(e, 's7')
    stamp(e, 0)
    e.raw('ITEM_X:')
    e.fence()
    qproj(e)
    stamp(e, 2)
    e.L('''
    s_cmp_eq_u32 s65, 1
    s_cbranch_scc1 MODE1
    s_cmp_eq_u32 s65, 2
    s_cbranch_scc1 MODE2
    ''')
    e.fence()
    kv_fast(e)
    e.fence()
    stamp(e, 4)
    epilogue(e, not ('noload' in EXP or 'nocomp' in EXP))
    stamp(e, 5)
    e.I('s_branch ITEM_END')
    e.raw('MODE1:'); e.fence()
    e.I(f'v_mov_b32 v{vM}, 0xff800000')
    kv_slow(e, 1)
    e.fence()
    swap_combine(e, vM, 'v_max_f32')
    e.I('s_branch ITEM_END')
    e.raw('MODE2:'); e.fence()
    kv_slow(e, 2)
    e.fence()
    epilogue(e, False)
    e.raw('ITEM_END:'); e.fence()
    e.L('''
    s_sub_u32 s62, s62, 1
    s_cmp_eq_u32 s62, 0
    s_cbranch_scc1 ITEMS_DONE
    s_xor_b32 s7, s7, 1
    s_branch ITEM2
    ITEMS_DONE:
    ''')
    e.L(f'''
    DECIDE:
    s_cmp_lg_u32 s65, 0
    s_cbranch_scc1 NEXT_REDO
    s_barrier
    v_mov_b32 v112, s40
    s_lshl_b32 s28, s3, 2
    v_mov_b32 v113, s28
    ds_write_b32 v113, v112
    s_waitcnt lgkmcnt(0)
    s_barrier
    v_and_b32 v113, 7, v0
    v_lshlrev_b32 v113, 2, v113
    ds_read_b32 v112, v113
    s_waitcnt lgkmcnt(0)
    v_and_b32 v113, 1, v112
    v_cmp_ne_u32 vcc, 0, v113
    v_and_b32 v113, 2, v112
    s_nop 4
    s_cmp_lg_u64 vcc, 0
    s_cselect_b32 s41, 1, 0
    v_cmp_ne_u32 vcc, 0, v113
    s_nop 4
    s_cmp_lg_u64 vcc, 0
    s_cselect_b32 s28, 2, 0
    s_or_b32 s41, s41, s28
    s_barrier
    s_mov_b32 s65, 2
    NEXT_REDO:
    s_cmp_eq_u32 s65, 1
    s_cbranch_scc1 REDO_PASS2
    s_cmp_eq_u32 s41, 0
    s_cbranch_scc1 K1_DONE
    s_and_b32 s28, s41, 1
    s_cselect_b32 s7, 0, 1
    s_cselect_b32 s28, 1, 2
    s_xor_b32 s41, s41, s28
    s_mov_b32 s65, 1
    s_branch REDO_GO
    REDO_PASS2:
    s_mov_b32 s65, 2
    REDO_GO:
    s_mov_b32 s62, 1
    s_barrier
    s_cmp_eq_u32 s3, 7
    s_cbranch_scc1 LD_STREAM
    s_branch ITEM
    K1_DONE:
    ''')
    if 'stamp' in EXP:
        e.L('''
        s_cmp_lg_u32 s2, STAMPWG
        s_cbranch_scc1 NOSTAMP
        s_cmp_lg_u32 s3, STAMPWV
        s_cbranch_scc1 NOSTAMP
        s_load_dwordx2 s[28:29], s[0:1], 88
        s_mov_b32 s30, 256
        s_mov_b32 s31, 0x20000
        v_lshlrev_b32 v248, 2, v0
        s_waitcnt lgkmcnt(0)
        buffer_store_dword v1, v248, s[28:31], 0 offen
        NOSTAMP:
        '''.replace('STAMPWG', os.environ.get('SWG', '0')).replace('STAMPWV', os.environ.get('SWV', '0')))
    e.L('''
    s_waitcnt vmcnt(0)
    K1_EXIT:
    s_endpgm
    ''')
```
